```python
import torch

def _softmax(x, axis=-1):
    return torch.softmax(x, dim=axis)
def _gelu(x):
    return torch.nn.functional.gelu(x, approximate="tanh")
def _silu(x):
    return torch.nn.functional.silu(x)
def _sigmoid(x):
    return torch.sigmoid(x)
def _layernorm(x, axis=-1, eps=1e-5):
    m = x.mean(dim=axis, keepdim=True)
    v = x.var(dim=axis, keepdim=True, unbiased=False)
    return (x - m) / torch.sqrt(v + eps)
def _scatter_add(tgt, idx, src, axis=0):
    return tgt.clone().index_add_(axis, idx, src)
def _segment_sum(src, seg, n):
    out = torch.zeros((n,) + src.shape[1:], dtype=src.dtype)
    return out.index_add_(0, seg, src)
def _pad(x, pw):
    flat = tuple(v for pair in reversed(pw) for v in pair)
    return torch.nn.functional.pad(x, flat)

kernel_name = 'gated_mix__sliding_block_cached__glu_gated_swiglu__decode'

def setup_inputs():

    _w = (lambda a: (lambda t: t.to(torch.bfloat16) if t.is_floating_point() else t)(torch.as_tensor(a)))
    def _A_setup():
        B, Sq, D = 8, 1, 512
        Hq, Hkv, Sk, Dh = 32, 32, 4096, 128
        assert Hq % Hkv == 0, (Hq, Hkv)
        return {
            "x": _w((lambda *s: torch.randn(*s, dtype=torch.bfloat16) * 0.05)(B, Sq, D)),
            "k_cache": _w((lambda *s: torch.randn(*s, dtype=torch.bfloat16) * 3.2)(B, Hkv, Sk, Dh)),
            "v_cache": _w((lambda *s: torch.randn(*s, dtype=torch.bfloat16) * 0.05)(B, Hkv, Sk, Dh)),
            "wq": _w((lambda *s: torch.randn(*s, dtype=torch.bfloat16) * 3.2)(D, Hq * Dh) * (D ** -0.5)),
            "wo": _w((lambda *s: torch.randn(*s, dtype=torch.bfloat16) * 0.05)(Hq * Dh, D) * ((Hq * Dh) ** -0.5)),
        }
    _A_in = _A_setup()

    def _B_setup():
        B, S, D, F = 8, 1, 512, 1376
        return {
            "x": _w((lambda *s: torch.randn(*s, dtype=torch.bfloat16) * 0.05)(B, S, D)),
            "w1": _w((lambda *s: torch.randn(*s, dtype=torch.bfloat16) * 0.2)(D, F) * (2.0 / D) ** 0.5),
            "w3": _w((lambda *s: torch.randn(*s, dtype=torch.bfloat16) * 0.2)(D, F) * (2.0 / D) ** 0.5),
            "w2": _w((lambda *s: torch.randn(*s, dtype=torch.bfloat16) * 0.2)(F, D) * (2.0 / F) ** 0.5),
        }
    _B_in = _B_setup()

    return {
        "A_x": _A_in["x"],
        "A_k_cache": _A_in["k_cache"],
        "A_v_cache": _A_in["v_cache"],
        "A_wq": _A_in["wq"],
        "A_wo": _A_in["wo"],
        "B_x": _B_in["x"],
        "B_w1": _B_in["w1"],
        "B_w3": _B_in["w3"],
        "B_w2": _B_in["w2"],
        "gate_w": _w((lambda *s: torch.randn(*s, dtype=torch.bfloat16) * 0.05)(512) * 16.0),
    }

def reference(A_x, A_k_cache, A_v_cache, A_wq, A_wo, B_x, B_w1, B_w3, B_w2, gate_w):
    def _A_ref(x, k_cache, v_cache, wq, wo):
        B, Sq, D = x.shape
        Hq, Dh = 32, 128
        Hkv, Sk = k_cache.shape[1], k_cache.shape[2]
        W = min(4096, max(256, Sk // 4))
        rep = Hq // Hkv
        q = (lambda x, *d: x.permute(*d))((x @ wq).reshape(B, Sq, Hq, Dh), 0, 2, 1, 3)
        k = (lambda x, n, axis: torch.repeat_interleave(x, n, dim=axis))(k_cache[:, :, Sk - W:, :], rep, axis=1)
        v = (lambda x, n, axis: torch.repeat_interleave(x, n, dim=axis))(v_cache[:, :, Sk - W:, :], rep, axis=1)
        scores = torch.einsum("bhqd,bhkd->bhqk", q, k) * (Dh ** -0.5)
        p = _softmax(scores, axis=-1)
        o = torch.einsum("bhqk,bhkd->bhqd", p, v)
        return (lambda x, *d: x.permute(*d))(o, 0, 2, 1, 3).reshape(B, Sq, Hq * Dh) @ wo

    def _B_ref(x, w1, w3, w2):
        gate = torch.einsum("bsd,df->bsf", x, w1)
        up = torch.einsum("bsd,df->bsf", x, w3)
        h = _silu(gate) * up
        out = torch.einsum("bsf,fd->bsd", h, w2)
        return out

    x = A_x
    g = _sigmoid((x * gate_w).sum(-1, keepdims=True))
    a = _A_ref(x, A_k_cache, A_v_cache, A_wq, A_wo)
    b = _B_ref(x, B_w1, B_w3, B_w2)
    return g * a + (1 - g) * b
```

```python
import re

TRANS = ("v_exp_f32", "v_log_f32", "v_rcp_f32", "v_rsq_f32", "v_sqrt_f32", "v_sin_f32", "v_cos_f32")

def regs_of(op):
    op = op.strip()
    op = re.sub(r"^-|^abs\(|\)$|^\|||\|$", "", op)
    m = re.fullmatch(r"([vsa])\[(\d+):(\d+)\]", op)
    if m:
        return {f"{m.group(1)}{i}" for i in range(int(m.group(2)), int(m.group(3)) + 1)}
    m = re.fullmatch(r"([vsa])(\d+)", op)
    if m:
        return {op}
    if op in ("vcc", "exec", "m0", "vcc_lo", "vcc_hi"):
        return {op.split("_")[0]}
    return set()

class Ins:
    pass

class Emitter:
    def __init__(self):
        self.lines = []
        self.hist = []
        self.vm = []
        self.next_id = 0
        self.nops = 0

    def raw(self, text):
        self.lines.append(text)

    def comment(self, text):
        self.lines.append("  ; " + text)

    def label(self, name, flush=True):
        self.lines.append(name + ":")

    def _classify(self, text):
        t = text.split(";")[0].strip()
        parts = t.split(None, 1)
        mn = parts[0]
        rest = parts[1] if len(parts) > 1 else ""
        ops = []; depth = 0; cur = ""
        for ch in rest:
            if ch == "[": depth += 1
            if ch == "]": depth -= 1
            if ch == "," and depth == 0:
                ops.append(cur); cur = ""
            else:
                cur += ch
        if cur.strip(): ops.append(cur)
        ops = [o.strip() for o in ops]
        mods = ""
        if ops:
            last = ops[-1].split(None, 1)
            ops[-1] = last[0]
            mods = last[1] if len(last) > 1 else ""
        I = Ins()
        I.mn = mn; I.text = text
        I.w = set(); I.r = set(); I.kind = "other"; I.srcC = set(); I.dpp = False; I.trans = False
        I.wide_store = set()
        R = [regs_of(o) for o in ops]
        if mn.startswith("v_mfma") or mn.startswith("v_smfmac"):
            I.kind = "mfma"; I.w = R[0]; I.r = R[1] | R[2] | R[3]; I.srcC = R[3]; I.ab = R[1] | R[2]
            if mn.startswith("v_smfmac"):
                I.srcC = R[0]; I.ab = R[1] | R[2] | R[3]; I.r |= R[0]
            I.passes = 8 if "32x32" in mn else 4
        elif mn.startswith("v_"):
            I.kind = "valu"
            I.w = set(R[0]); I.r = set().union(*R[1:]) if len(R) > 1 else set()
            base = mn.replace("_e32", "").replace("_e64", "").replace("_dpp", "")
            if base.startswith("v_fmac") or base.startswith("v_dot2c"): I.r |= R[0]
            if base.startswith("v_permlane"):
                I.r = R[0] | R[1]; I.w = R[0] | R[1]; I.kind = "valu"; I.perm = True
            if base in ("v_add_co_u32", "v_sub_co_u32", "v_addc_co_u32"):
                I.w = R[0] | R[1]; I.r = set().union(*R[2:])
            if "_dpp" in mn:
                I.dpp = True; I.r |= R[0]
            if base in TRANS: I.trans = True
        elif mn.startswith("buffer_") or mn.startswith("global_"):
            I.kind = "vmem"
            allr = set().union(*R) if R else set()
            if "load" in mn and " lds" not in (" " + mods):
                I.w = R[0]; I.r = set().union(*R[1:])
            elif "atomic" in mn:
                I.r = allr
                if "sc0" in mods: I.w = R[0]
            else:
                I.r = allr
                if "x4" in mn or "x3" in mn: I.wide_store = R[0] if mn.startswith("buffer_") else R[1]
        elif mn.startswith("ds_"):
            I.kind = "ds"
            if mn.startswith("ds_read") or mn.startswith("ds_bpermute") or mn.startswith("ds_swizzle"):
                I.w = R[0]; I.r = set().union(*R[1:])
            else:
                I.r = set().union(*R)
        elif mn.startswith("s_"):
            I.kind = "salu"
            if R and mn not in ("s_waitcnt", "s_nop", "s_barrier") and not mn.startswith("s_cmp") and not mn.startswith("s_cbranch"):
                I.w = R[0]; I.r = set().union(*R[1:]) if len(R) > 1 else set()
            else:
                I.r = set().union(*R) if R else set()
        return I

    def _need(self, P, C):
        need = 0
        vw = {x for x in P.w if x[0] in "va" and x != "vcc"}
        sw = {x for x in P.w if x[0] == "s" or x in ("vcc",)}
        if P.kind == "valu":
            if C.kind == "mfma" and vw & C.r: need = max(need, 2)
            if C.kind == "valu":
                if C.dpp and vw & C.r: need = max(need, 2)
                if getattr(C, "perm", False) and vw & C.r: need = max(need, 2)
                if C.mn.startswith("v_readlane") or C.mn.startswith("v_readfirstlane"):
                    if vw & C.r: need = max(need, 1)
                    if sw & C.r: need = max(need, 4)
                if P.trans and vw & C.r: need = max(need, 1)
                if sw & C.r: need = max(need, 2)
            if C.kind == "vmem" and sw & C.r: need = max(need, 5)
            if C.kind == "salu" and sw & C.r: need = max(need, 2)
            if C.kind == "salu" and C.mn.startswith("s_cbranch_vcc") and "vcc" in sw: need = max(need, 2)
        if P.kind == "mfma":
            big = {4: 8, 8: 12}[P.passes]
            if C.kind == "mfma":
                if P.w & C.ab: need = max(need, big)
                if P.w & C.srcC and P.w != C.srcC: need = max(need, big - 2)
                if P.w & C.w and P.w != C.srcC: need = max(need, big)
            elif C.kind in ("valu", "vmem", "ds"):
                if P.w & (C.r | C.w): need = max(need, big)
            if C.kind == "valu" and P.srcC & C.w: need = max(need, {4: 3, 8: 7}[P.passes])
        if P.kind == "vmem" and P.wide_store and C.kind in ("valu", "mfma", "vmem", "ds") and P.wide_store & C.w:
            need = max(need, 2)
        if P.kind == "salu" and "m0" in P.w and C.kind == "vmem" and " lds" in C.text: need = max(need, 1)
        return need

    def __call__(self, text):
        C = self._classify(text)
        pad = 0
        for (P, age) in self.hist:
            n = self._need(P, C) - age
            pad = max(pad, n)
        if pad > 0:
            self._nop(pad)
        self.lines.append("  " + text)
        states = 1
        if C.mn == "s_nop":
            states = int(text.split()[1]) + 1
        self.hist = [(P, a + states) for (P, a) in self.hist if a + states < 24]
        self.hist.append((C, 0))
        return C

    def _nop(self, n):
        self.nops += n
        while n > 0:
            k = min(n, 16)
            self.lines.append(f"  s_nop {k-1}")
            self.hist = [(P, a + k) for (P, a) in self.hist]
            n -= k

    def drain_hazards(self, n=12):
        worst = 0
        for (P, age) in self.hist:
            lim = 0
            if P.kind == "mfma": lim = {4: 8, 8: 12}[P.passes]
            elif P.kind == "valu": lim = 5 if any(x[0] == "s" or x == "vcc" for x in P.w) else 2
            elif P.kind == "vmem" and P.wide_store: lim = 2
            worst = max(worst, lim - age)
        if worst > 0: self._nop(worst)

    def vmem(self, text, counted=True):
        self(text)
        if not counted: return None
        i = self.next_id; self.next_id += 1
        self.vm.append(i)
        return i

    def wait_vm(self, i):
        if i not in self.vm: return
        k = self.vm.index(i)
        n = len(self.vm) - 1 - k
        if n > 63:
            n = 63
            k = len(self.vm) - 1 - n
        self(f"s_waitcnt vmcnt({n})")
        self.vm = self.vm[k + 1:]

    def wait_vm_all(self):
        self("s_waitcnt vmcnt(0)")
        self.vm = []

    def text(self):
        return "\n".join(self.lines) + "\n"
```

```python
import sys, argparse
from emit import Emitter
NAME = "gated_mix__sliding_block_cached__glu_gated_swiglu__decode"
HEADER = open("cdna_kernels/" + NAME + ".s.ref").read().split("; Override launch")[0]

DPP = "row_mask:0xf bank_mask:0xf"
LOG2E = "0x3fb8aa3b"

def gen(NSLOT=25, KV="nt", WP="nt", STAMPS=False, KQ=(3,2,3,2,3,2,2), K0=0, TAILV=16):
    E = Emitter()
    e = E
    QP, UP, OP, QB, GP, ML = 0, 8192, 16384, 24576, 26624, 26688
    LDS = 27648
    sW = "s3"
    sH, sB = "s30", "s31"
    sK, sV, sWq, sWo, sW1, sW3, sW2, sX, sG, sWs, sOut, sDbg = [f"s[{32+4*i}:{35+4*i}]" for i in range(12)]
    def srd(i): return 32 + 4 * i
    cK, cV, cWq, cW13, cWo, cW2 = "s84", "s85", "s86", "s87", "s88", "s89"
    sSG, sCNT, sT0, sT1, sT2, sXO, sOB = "s90", "s91", "s92", "s93", "s94", "s95", "s96"
    nxt = [1]
    def vnew(n=1, align=1):
        while nxt[0] % align: nxt[0] += 1
        r = nxt[0]; nxt[0] += n
        return r
    vL = 0
    vL16 = vnew(); vKo = vnew(); vWqo = vnew(); vW13o = vnew(); vWoo = vnew(); vW2o = vnew()
    vDup = vnew()
    vM = vnew(4, 4)
    vA = [vnew(4, 4), vnew(4, 4)]
    vD0 = vnew(4, 4); vD1 = vnew(4, 4); vD2 = vnew(4, 4)
    vQ = vnew(16, 4)
    vS = vnew(8, 4)
    vT = vnew(8, 4)
    vG = vnew(); vG1 = vnew(); vHd = vnew(); vRdy = vnew()
    slot0 = vnew(0, 4)
    slots = [slot0 + 4 * i for i in range(NSLOT)]
    NV = slot0 + 4 * NSLOT
    def v(r): return f"v{r}"
    def v4(r): return f"v[{r}:{r+3}]"
    def v2(r): return f"v[{r}:{r+1}]"

    stamp_n = [0]
    def stamp():
        if not STAMPS: return
        k = stamp_n[0]; stamp_n[0] += 1
        e(f"s_memrealtime s[{4+2*k}:{5+2*k}]")

    e.raw(HEADER.rstrip())
    e.raw(f"; @launch grid=(256,1,1) block=(512,1,1) lds={LDS}")
    e.raw('.amdgcn_target "amdgcn-amd-amdhsa--gfx950"')
    e.raw(".text")
    e.raw(f".globl {NAME}_kernel")
    e.raw(".p2align 8")
    e.raw(f".type {NAME}_kernel,@function")
    e.raw(f"{NAME}_kernel:")
    if STAMPS: e("s_memrealtime s[98:99]")
    e("s_load_dwordx16 s[4:19], s[0:1], 0")
    e("s_load_dwordx8 s[20:27], s[0:1], 64")
    e("s_load_dwordx2 s[28:29], s[0:1], 96")
    e("s_cmp_ge_u32 s2, 256")
    e("s_cbranch_scc1 L_end")
    t0, t1, t2, t3 = vT, vT + 1, vT + 2, vT + 3
    e(f"v_lshrrev_b32 {v(t0)}, 6, v0")
    e(f"v_and_b32 v0, 63, v0")
    e(f"v_readfirstlane_b32 {sW}, {v(t0)}")
    e(f"v_lshlrev_b32 {v(vL16)}, 4, v0")
    e(f"v_lshrrev_b32 {v(t0)}, 4, v0")
    e(f"v_and_b32 {v(t1)}, 15, v0")
    e(f"v_bfe_u32 {v(t2)}, v0, 2, 2")
    e(f"v_lshlrev_b32 {v(vKo)}, 8, {v(t2)}")
    e(f"v_lshl_or_b32 {v(vKo)}, {v(t0)}, 6, {v(vKo)}")
    e(f"v_and_b32 {v(t2)}, 3, v0")
    e(f"v_lshl_or_b32 {v(vKo)}, {v(t2)}, 4, {v(vKo)}")
    e(f"v_lshlrev_b32 {v(t3)}, 4, {v(t1)}")
    e(f"v_lshl_or_b32 {v(vWqo)}, {v(t0)}, 17, {v(t3)}")
    e(f"v_lshl_or_b32 {v(vWoo)}, {v(t0)}, 15, {v(t3)}")
    e(f"v_mul_u32_u24 {v(vW2o)}, 6144, {v(t0)}")
    e(f"v_add_u32 {v(vW2o)}, {v(vW2o)}, {v(t3)}")
    e(f"v_mul_u32_u24 {v(vW13o)}, 44032, {v(t0)}")
    e(f"v_and_b32 {v(t3)}, 0x70, {v(t3)}")
    e(f"v_add_u32 {v(vW13o)}, {v(vW13o)}, {v(t3)}")
    e(f"s_and_b32 {sH}, s2, 31")
    e(f"s_lshr_b32 {sB}, s2, 5")
    e(f"s_lshl_b32 {sT0}, s2, 20")
    e(f"s_add_u32 {sT0}, {sT0}, 0xC0000")
    e(f"s_lshl_b32 {cK}, {sW}, 12")
    e(f"s_mov_b32 {cV}, {cK}")
    e(f"s_lshl_b32 {cWq}, {sW}, 19")
    e(f"s_mul_i32 {cW13}, {sW}, {64*2752}")
    e(f"s_mul_i32 {sSG}, {sH}, 43")
    e(f"s_add_u32 {sCNT}, {sSG}, 43")
    e(f"s_lshr_b32 {sSG}, {sSG}, 3")
    e(f"s_lshr_b32 {sCNT}, {sCNT}, 3")
    e(f"s_sub_u32 {sCNT}, {sCNT}, {sSG}")
    e(f"s_lshl_b32 {sCNT}, {sCNT}, 3")
    e(f"s_mov_b32 s80, 0x003f003f")
    e(f"s_mov_b32 s81, 0x003f003f")
    e(f"s_mov_b32 s82, 0x3f003f00")
    e(f"s_mov_b32 s83, 0x3f003f00")
    e(f"s_lshl_b32 {sXO}, {sW}, 7")
    e(f"s_lshl_b32 {sOB}, s2, 12")
    e(f"s_lshl_b32 {sT1}, {sW}, 9")
    e(f"s_add_u32 {sOB}, {sOB}, {sT1}")
    e(f"s_lshr_b32 {sT1}, {sW}, 2")
    e(f"s_and_b32 {sT2}, {sW}, 3")
    e(f"s_lshl_b32 {sT2}, {sT2}, 8")
    e(f"s_lshl_b32 {cWo}, {sT1}, 12")
    e(f"s_add_u32 {cWo}, {cWo}, {sT2}")
    e(f"s_mul_i32 {cW2}, {sT1}, {24*1024}")
    e(f"s_add_u32 {cW2}, {cW2}, {sT2}")
    for i in range(12):
        e(f"s_mov_b32 s{srd(i)+3}, 0x20000")
    e(f"s_mov_b32 s{srd(0)+2}, 0x40000")
    e(f"s_mov_b32 s{srd(1)+2}, 0x40000")
    e(f"v_lshlrev_b32 {v(t2)}, 1, v0")
    e(f"v_lshlrev_b32 {v(t3)}, 3, v0")
    e(f"v_mov_b32 {v(vT+4)}, -1")
    e(f"v_mov_b32 {v(vT+5)}, -1")
    e("s_waitcnt lgkmcnt(0)")
    def mk(i, ptr, off, size):
        b = srd(i)
        if off is None:
            e(f"s_mov_b32 s{b}, s{ptr}")
            e(f"s_mov_b32 s{b+1}, s{ptr+1}")
        else:
            e(f"s_add_u32 s{b}, s{ptr}, {off}")
            e(f"s_addc_u32 s{b+1}, s{ptr+1}, 0")
        if size is not None:
            if isinstance(size, int): e(f"s_mov_b32 s{b+2}, {size}")
            else: e(f"s_sub_u32 s{b+2}, {size[0]}, {size[1]}")
    mk(0, 6, sT0, None)

    free = list(slots)
    got = {}
    queue = []
    def do_issue(item):
        kind, n = item
        if kind == "K" or kind == "V":
            s = free.pop(0)
            cur, rs, off = (cK, sK, vKo) if kind == "K" else (cV, sV, vL16)
            if n % 4 == 0 and n > 0: e(f"s_add_u32 {cur}, {cur}, 0x8000")
            i = e.vmem(f"buffer_load_dwordx4 {v4(s)}, {v(off)}, {rs}, {cur} offen offset:{(n%4)*1024} {KV}")
            got[item] = (s, i)
        elif kind == "Wq":
            s = free.pop(0)
            if n > 0: e(f"s_addk_i32 {cWq}, 0x2000")
            i = e.vmem(f"buffer_load_dwordx4 {v4(s)}, {v(vWqo)}, {sWq}, {cWq} offen {WP}")
            got[item] = (s, i)
        elif kind == "W13":
            s0 = free.pop(0); s1 = free.pop(0)
            if n > 0: e(f"s_addk_i32 {cW13}, {2*2752}")
            e("s_mov_b64 exec, s[80:81]")
            e.vmem(f"buffer_load_dwordx4 {v4(s0)}, {v(vW13o)}, {sW1}, {cW13} offen {WP}")
            e.vmem(f"buffer_load_dwordx4 {v4(s1)}, {v(vW13o)}, {sW1}, {cW13} offen offset:2752 {WP}")
            e("s_mov_b64 exec, s[82:83]")
            i0 = e.vmem(f"buffer_load_dwordx4 {v4(s0)}, {v(vW13o)}, {sW3}, {cW13} offen {WP}")
            i1 = e.vmem(f"buffer_load_dwordx4 {v4(s1)}, {v(vW13o)}, {sW3}, {cW13} offen offset:2752 {WP}")
            e("s_mov_b64 exec, -1")
            got[("W13r", 2*n)] = (s0, i0); got[("W13r", 2*n+1)] = (s1, i1)
        elif kind == "Wo":
            s = free.pop(0)
            if n % 4 == 0 and n > 0: e(f"s_addk_i32 {cWo}, 0x2000")
            i = e.vmem(f"buffer_load_dwordx4 {v4(s)}, {v(vWoo)}, {sWo}, {cWo} offen offset:{(n%4)*1024} {WP}")
            got[item] = (s, i)
        elif kind == "W2":
            s = free.pop(0)
            if n == 4: e(f"s_addk_i32 {cW2}, 0x1000")
            i = e.vmem(f"buffer_load_dwordx4 {v4(s)}, {v(vW2o)}, {sW2}, {cW2} offen offset:{(n%4)*1024} {WP}")
            got[item] = (s, i)
        elif kind == "RDY":
            e(f"v_mov_b32 {v(vRdy)}, 0")
            e(f"s_lshl_b32 {sT0}, {sB}, 5")
            i = e.vmem(f"buffer_load_dword {v(vRdy)}, {v(vRdy)}, {sDbg}, {sT0} offen sc1")
            got[item] = (None, i)
    def need(item): return {"W13": 2, "RDY": 0}.get(item[0], 1)
    def pump(limit=None):
        c = 0
        while queue and len(free) >= need(queue[0]) and (limit is None or c < limit):
            do_issue(queue.pop(0)); c += 1
    def use(item):
        s, i = got[item]
        e.wait_vm(i)
        return s
    def release(item):
        free.append(got[item][0])

    kn = 0
    for _ in range(K0):
        queue.append(("K", kn)); kn += 1
    pump()
    mk(9, 28, None, 0x100000)
    e(f"s_lshl_b32 {sT1}, {sB}, 10")
    mk(7, 4, sT1, 1024)
    mk(8, 22, None, 1024)
    id_clear = e.vmem(f"buffer_atomic_swap_x2 {v2(vT+4)}, {v(t3)}, {sWs}, {sOB} offen sc0 sc1")
    id_x = e.vmem(f"buffer_load_ushort {v(vDup)}, {v(t2)}, {sX}, {sXO} offen")
    id_g = e.vmem(f"buffer_load_ushort {v(vG)}, {v(t2)}, {sG}, {sXO} offen")
    e(f"s_lshl_b32 {sT1}, {sH}, 8")
    mk(2, 10, sT1, ("0x400000", sT1))
    e(f"s_lshl_b32 {sT1}, {sSG}, 4")
    mk(4, 16, sT1, (str(512*2752), sT1))
    mk(5, 18, sT1, (str(512*2752), sT1))
    for d in range(8):
        queue.append(("Wq", 2*d)); queue.append(("Wq", 2*d+1)); queue.append(("W13", d))
        if d < 7:
            for _ in range(KQ[d]):
                queue.append(("K", kn)); kn += 1
    while kn < 32:
        queue.append(("K", kn)); kn += 1
    for n in range(6): queue.append(("W2", n))
    vn = 0; wn = 0
    headv = 32 - TAILV
    acc = 0.0
    while vn < headv or wn < 16:
        if vn < headv and (wn >= 16 or vn * 16 <= wn * headv):
            queue.append(("V", vn)); vn += 1
        else:
            queue.append(("Wo", wn)); wn += 1
    queue.append(("RDY", 0))
    while vn < 32:
        queue.append(("V", vn)); vn += 1
    pump(6)
    mk(1, 8, sT0, None)
    e(f"s_lshl_b32 {sT1}, {sH}, 17")
    mk(3, 12, sT1, 0x20000)
    e(f"s_lshl_b32 {sT1}, {sSG}, 13")
    mk(6, 20, sT1, (str(1376*1024), sT1))
    mk(10, 24, None, 8192)
    mk(11, 26, None, 256)
    pump()
    e(f"v_and_b32 {v(t2)}, 1, v0")
    e(f"v_lshlrev_b32 {v(t2)}, 4, {v(t2)}")
    e(f"v_mov_b32 {v(t3)}, 0xffff")
    e(f"v_lshlrev_b32 {v(t2)}, {v(t2)}, {v(t3)}")
    e(f"v_lshrrev_b32 {v(t3)}, 1, {v(t1)}")
    for m in range(4):
        e(f"v_cmp_eq_u32 vcc, {m}, {v(t3)}")
        e(f"v_cndmask_b32 {v(vM+m)}, 0, {v(t2)}, vcc")
    stamp()
    e.wait_vm(id_g)
    e(f"v_lshlrev_b32 {v(t2)}, 16, {v(vDup)}")
    e(f"v_lshlrev_b32 {v(t3)}, 16, {v(vG)}")
    e(f"v_or_b32 {v(vDup)}, {v(vDup)}, {v(t2)}")
    e(f"v_mul_f32 {v(t2)}, {v(t2)}, {v(t3)}")
    e(f"v_cvt_pk_bf16_f32 {v(t2)}, {v(t2)}, {v(t2)}")
    e(f"v_and_b32 {v(t2)}, 0xffff0000, {v(t2)}")
    def rowred(op, r):
        e(f"{op}_dpp {v(r)}, {v(r)}, {v(r)} row_ror:4 {DPP}")
        e(f"{op}_dpp {v(r)}, {v(r)}, {v(r)} row_ror:8 {DPP}")
    def crossred(op, r, tmp):
        e(f"v_mov_b32 {v(tmp)}, {v(r)}")
        e(f"v_permlane16_swap_b32 {v(r)}, {v(tmp)}")
        e(f"{op} {v(r)}, {v(r)}, {v(tmp)}")
        e(f"v_mov_b32 {v(tmp)}, {v(r)}")
        e(f"v_permlane32_swap_b32 {v(r)}, {v(tmp)}")
        e(f"{op} {v(r)}, {v(r)}, {v(tmp)}")
    e(f"v_add_f32_dpp {v(t2)}, {v(t2)}, {v(t2)} quad_perm:[1,0,3,2] {DPP}")
    e(f"v_add_f32_dpp {v(t2)}, {v(t2)}, {v(t2)} quad_perm:[2,3,0,1] {DPP}")
    rowred("v_add_f32", t2)
    crossred("v_add_f32", t2, t3)
    e(f"s_lshl_b32 {sT0}, {sW}, 2")
    e(f"v_mov_b32 {v(t3)}, {sT0}")
    e("s_mov_b64 exec, 1")
    e(f"ds_write_b32 {v(t3)}, {v(t2)} offset:{GP}")
    e("s_mov_b64 exec, -1")

    def buildA(buf, src, lane):
        for m in range(4):
            e(f"v_and_b32_dpp {v(vA[buf]+m)}, {v(src)}, {v(vM+m)} row_newbcast:{lane} {DPP}")
    def mfma(D, A, B, first):
        e(f"v_mfma_f32_16x16x32_bf16 {v4(D)}, {v4(A)}, {v4(B)}, {'0' if first else v4(D)}")

    for n in range(16):
        buildA(n % 2, vDup, n)
        s = use(("Wq", n))
        mfma(vD0, vA[n % 2], s, n == 0)
        s = use(("W13r", n))
        mfma(vD1, vA[n % 2], s, n == 0)
        release(("Wq", n)); release(("W13r", n))
        pump()
    e(f"s_lshl_b32 {sT0}, {sW}, 10")
    e(f"v_add_u32 {v(t0)}, {sT0}, {v(vL16)}")
    vPW = t0
    e(f"ds_write_b128 {v(vPW)}, {v4(vD0)} offset:{QP}")
    e(f"ds_write_b128 {v(vPW)}, {v4(vD1)} offset:{UP}")
    e("s_waitcnt lgkmcnt(0)")
    stamp()
    e("s_barrier")
    e(f"s_cmp_lg_u32 {sW}, 0")
    e("s_cbranch_scc1 L_nosig")
    e(f"v_mov_b32 {v(t2)}, 0")
    e(f"v_mov_b32 {v(t3)}, 1")
    e(f"s_lshl_b32 {sT0}, {sB}, 5")
    e("s_mov_b64 exec, 1")
    e.vmem(f"buffer_atomic_add {v(t3)}, {v(t2)}, {sDbg}, {sT0} offen sc1", counted=False)
    e("s_mov_b64 exec, -1")
    e.label("L_nosig")
    e(f"v_lshlrev_b32 {v(t2)}, 3, v0")
    for k in range(4):
        e(f"ds_read2st64_b64 v[{vQ+4*k}:{vQ+4*k+3}], {v(t2)} offset0:{(QP + 2048*k)//512} offset1:{(QP + 2048*k + 1024)//512}")
    e(f"v_mov_b32 {v(t3)}, 0")
    e(f"ds_read_b128 {v4(vS)}, {v(t3)} offset:{GP}")
    e(f"ds_read_b128 {v4(vS+4)}, {v(t3)} offset:{GP+16}")
    e(f"v_bfe_u32 {v(t2)}, v0, 1, 4")
    e(f"v_lshlrev_b32 {v(t2)}, 4, {v(t2)}")
    e(f"v_lshrrev_b32 {v(t3)}, 5, v0")
    e(f"v_lshl_or_b32 {v(t2)}, {v(t3)}, 3, {v(t2)}")
    e(f"v_and_b32 {v(t3)}, 1, v0")
    e(f"v_lshl_or_b32 {v(t2)}, {v(t3)}, 2, {v(t2)}")
    e(f"s_lshl_b32 {sT0}, {sW}, 8")
    e(f"v_add_u32 {v(t2)}, {sT0}, {v(t2)}")
    e(f"v_lshrrev_b32 {v(t3)}, 4, v0")
    e(f"v_lshlrev_b32 {v(t3)}, 6, {v(t3)}")
    e(f"v_and_b32 {v(vT+4)}, 3, v0")
    e(f"v_lshl_or_b32 {v(t3)}, {v(vT+4)}, 4, {v(t3)}")
    e(f"v_add_u32 {v(t3)}, {sT0}, {v(t3)}")
    e("s_waitcnt lgkmcnt(0)")
    for st in (8, 4, 2):
        for k in range(0, st, 2):
            e(f"v_pk_add_f32 {v2(vQ+k)}, {v2(vQ+k)}, {v2(vQ+k+st)}")
    e(f"v_cvt_pk_bf16_f32 {v(vQ)}, {v(vQ)}, {v(vQ+1)}")
    e(f"ds_write_b32 {v(t2)}, {v(vQ)} offset:{QB}")
    e("s_waitcnt lgkmcnt(0)")
    e(f"ds_read_b128 {v4(vA[0])}, {v(t3)} offset:{QB}")
    e(f"v_lshrrev_b32 {v(t2)}, 4, v0")
    e(f"v_mul_u32_u24 {v(t2)}, 6, {v(t2)}")
    e(f"v_add_u32 {v(t2)}, {v(t2)}, {v(t1)}")
    e(f"s_lshr_b32 {sT0}, {sW}, 2")
    e(f"s_mul_i32 {sT0}, {sT0}, 24")
    e(f"v_add_u32 {v(t2)}, {sT0}, {v(t2)}")
    e(f"v_bfe_u32 {v(t3)}, {v(t2)}, 2, 1")
    e(f"v_lshlrev_b32 {v(t3)}, 8, {v(t3)}")
    e(f"v_lshrrev_b32 {v(vT+4)}, 3, {v(t2)}")
    e(f"v_lshl_or_b32 {v(t3)}, {v(vT+4)}, 4, {v(t3)}")
    e(f"v_and_b32 {v(vT+4)}, 3, {v(t2)}")
    e(f"v_lshl_or_b32 {v(t3)}, {v(vT+4)}, 2, {v(t3)}")
    e(f"v_add_u32 {v(vT+4)}, 128, {v(t3)}")
    for k in range(4):
        e(f"ds_read2st64_b32 {v2(vQ+2*k)}, {v(t3)} offset0:{(UP+2048*k)//256} offset1:{(UP+2048*k+1024)//256}")
    for k in range(4):
        e(f"ds_read2st64_b32 {v2(vQ+8+2*k)}, {v(vT+4)} offset0:{(UP+2048*k)//256} offset1:{(UP+2048*k+1024)//256}")
    e(f"v_cmp_gt_u32 vcc, {sCNT}, {v(t2)}")
    def rbf(r):
        e(f"v_cvt_pk_bf16_f32 {v(r)}, {v(r)}, {v(r)}")
        e(f"v_and_b32 {v(r)}, 0xffff0000, {v(r)}")
    def sigm(dst, src):
        e(f"v_mul_f32 {v(dst)}, 0xbfb8aa3b, {v(src)}")
        e(f"v_exp_f32 {v(dst)}, {v(dst)}")
        e(f"v_add_f32 {v(dst)}, 1.0, {v(dst)}")
        e(f"v_rcp_f32 {v(dst)}, {v(dst)}")
    for st in (4, 2):
        for k in range(0, st, 2):
            e(f"v_pk_add_f32 {v2(vS+k)}, {v2(vS+k)}, {v2(vS+k+st)}")
    e(f"v_add_f32 {v(vS)}, {v(vS)}, {v(vS+1)}")
    rbf(vS)
    sigm(vG, vS)
    rbf(vG)
    e(f"v_sub_f32 {v(vG1)}, 1.0, {v(vG)}")
    rbf(vG1)
    e("s_waitcnt lgkmcnt(0)")
    for base in (vQ, vQ + 8):
        for st in (4, 2):
            for k in range(0, st, 2):
                e(f"v_pk_add_f32 {v2(base+k)}, {v2(base+k)}, {v2(base+k+st)}")
        e(f"v_add_f32 {v(base)}, {v(base)}, {v(base+1)}")
        rbf(base)
    sigm(vHd, vQ)
    e(f"v_mul_f32 {v(vHd)}, {v(vHd)}, {v(vQ)}")
    rbf(vHd)
    e(f"v_mul_f32 {v(vHd)}, {v(vHd)}, {v(vQ+8)}")
    e(f"v_cvt_pk_bf16_f32 {v(vHd)}, {v(vHd)}, {v(vHd)}")
    e(f"v_cndmask_b32 {v(vHd)}, 0, {v(vHd)}, vcc")
    e(f"v_bfe_u32 {v(t2)}, v0, 2, 2")
    for u in range(4):
        e(f"v_cmp_eq_u32 vcc, {u}, {v(t2)}")
        for m in range(4):
            e(f"v_cndmask_b32 {v(vQ+4*u+m)}, 0, {v(vA[0]+m)}, vcc")
    stamp()
    def score_reduce(gi):
        D = (vD0, vD1)[gi % 2]
        r = vS + gi
        e(f"v_mov_b32_dpp {v(r)}, {v(D)} quad_perm:[0,0,0,0] {DPP}")
        e(f"v_mov_b32_dpp {v(vT+6)}, {v(D+1)} quad_perm:[1,1,1,1] {DPP}")
        e(f"v_mov_b32_dpp {v(vT+7)}, {v(D+2)} quad_perm:[2,2,2,2] {DPP}")
        e(f"v_add_f32_dpp {v(r)}, {v(D+3)}, {v(r)} quad_perm:[3,3,3,3] {DPP}")
        e(f"v_add_f32 {v(vT+6)}, {v(vT+6)}, {v(vT+7)}")
        e(f"v_add_f32 {v(r)}, {v(r)}, {v(vT+6)}")
    for gi in range(8):
        D = (vD0, vD1)[gi % 2]
        for u in range(4):
            s = use(("K", 4*gi+u))
            mfma(D, s, vQ + 4*u, u == 0)
        for u in range(4): release(("K", 4*gi+u))
        pump()
        if gi > 0: score_reduce(gi - 1)
    for n in range(6):
        buildA(n % 2, vHd, n)
        s = use(("W2", n))
        mfma(vD2, vA[n % 2], s, n == 0)
        release(("W2", n))
    pump()
    score_reduce(7)
    e(f"s_mov_b32 {sT0}, 0x3db504f3")
    for k in range(0, 8, 2):
        a, b = vS + k, vS + k + 1
        e(f"v_cvt_pk_bf16_f32 {v(b)}, {v(a)}, {v(b)}")
        e(f"v_lshlrev_b32 {v(a)}, 16, {v(b)}")
        e(f"v_and_b32 {v(b)}, 0xffff0000, {v(b)}")
        e(f"v_mul_f32 {v(a)}, {sT0}, {v(a)}")
        e(f"v_mul_f32 {v(b)}, {sT0}, {v(b)}")
        e(f"v_cvt_pk_bf16_f32 {v(b)}, {v(a)}, {v(b)}")
        e(f"v_lshlrev_b32 {v(a)}, 16, {v(b)}")
        e(f"v_and_b32 {v(b)}, 0xffff0000, {v(b)}")
    vm_, vl_ = vT + 4, vT + 5
    e(f"v_max3_f32 {v(vm_)}, {v(vS)}, {v(vS+1)}, {v(vS+2)}")
    e(f"v_max3_f32 {v(vm_)}, {v(vm_)}, {v(vS+3)}, {v(vS+4)}")
    e(f"v_max3_f32 {v(vm_)}, {v(vm_)}, {v(vS+5)}, {v(vS+6)}")
    e(f"v_max_f32 {v(vm_)}, {v(vm_)}, {v(vS+7)}")
    rowred("v_max_f32", vm_)
    crossred("v_max_f32", vm_, t3)
    for k in range(8):
        e(f"v_sub_f32 {v(vS+k)}, {v(vS+k)}, {v(vm_)}")
    for k in range(8):
        e(f"v_mul_f32 {v(vS+k)}, {LOG2E}, {v(vS+k)}")
    for k in range(8):
        e(f"v_exp_f32 {v(vS+k)}, {v(vS+k)}")
    for r in range(4):
        e(f"v_mul_f32 {v(vD2+r)}, {v(vG1)}, {v(vD2+r)}")
    e(f"v_pk_add_f32 {v2(vA[0])}, {v2(vS)}, {v2(vS+2)}")
    e(f"v_pk_add_f32 {v2(vA[0]+2)}, {v2(vS+4)}, {v2(vS+6)}")
    e(f"v_pk_add_f32 {v2(vA[0])}, {v2(vA[0])}, {v2(vA[0]+2)}")
    e(f"v_add_f32 {v(vl_)}, {v(vA[0])}, {v(vA[0]+1)}")
    rowred("v_add_f32", vl_)
    crossred("v_add_f32", vl_, t3)
    e(f"s_lshl_b32 {sT0}, {sW}, 3")
    e(f"v_mov_b32 {v(t3)}, {sT0}")
    e("s_mov_b64 exec, 1")
    e(f"ds_write_b64 {v(t3)}, {v2(vm_)} offset:{ML}")
    e("s_mov_b64 exec, -1")
    e("s_waitcnt lgkmcnt(0)")
    stamp()
    e("s_barrier")
    e(f"v_mov_b32 {v(t3)}, 0")
    for k in range(4):
        e(f"ds_read_b128 {v4(vQ+4*k)}, {v(t3)} offset:{ML+16*k}")
    e("s_waitcnt lgkmcnt(0)")
    e(f"v_max3_f32 {v(t2)}, {v(vQ)}, {v(vQ+2)}, {v(vQ+4)}")
    e(f"v_max3_f32 {v(t2)}, {v(t2)}, {v(vQ+6)}, {v(vQ+8)}")
    e(f"v_max3_f32 {v(t2)}, {v(t2)}, {v(vQ+10)}, {v(vQ+12)}")
    e(f"v_max_f32 {v(t2)}, {v(t2)}, {v(vQ+14)}")
    for k in range(8): e(f"v_sub_f32 {v(vQ+2*k)}, {v(vQ+2*k)}, {v(t2)}")
    e(f"v_sub_f32 {v(vm_)}, {v(vm_)}, {v(t2)}")
    for k in range(8): e(f"v_mul_f32 {v(vQ+2*k)}, {LOG2E}, {v(vQ+2*k)}")
    e(f"v_mul_f32 {v(vm_)}, {LOG2E}, {v(vm_)}")
    for k in range(8): e(f"v_exp_f32 {v(vQ+2*k)}, {v(vQ+2*k)}")
    e(f"v_exp_f32 {v(vm_)}, {v(vm_)}")
    e(f"v_mul_f32 {v(vl_)}, {v(vQ)}, {v(vQ+1)}")
    for k in range(1, 8): e(f"v_fmac_f32 {v(vl_)}, {v(vQ+2*k)}, {v(vQ+2*k+1)}")
    e(f"v_rcp_f32 {v(vl_)}, {v(vl_)}")
    e(f"v_mul_f32 {v(vm_)}, {v(vm_)}, {v(vl_)}")
    for k in range(8): e(f"v_mul_f32 {v(vS+k)}, {v(vS+k)}, {v(vm_)}")
    for k in range(8): e(f"v_cvt_pk_bf16_f32 {v(vS+k)}, {v(vS+k)}, {v(vS+k)}")
    for k in range(4): free.append(vQ + 4*k)
    pump()
    vOA, vSO, vPO, vOO = vKo, vWqo, vW13o, vW2o
    assert not any(it[0] in ("K", "Wq", "W13", "W2") for it in queue)
    e(f"s_lshr_b32 {sT0}, {sW}, 2")
    e(f"s_lshl_b32 {sT0}, {sT0}, 8")
    e(f"v_lshlrev_b32 {v(vOA)}, 2, v0")
    e(f"v_add_u32 {v(vOA)}, {sT0}, {v(vOA)}")
    e(f"v_lshlrev_b32 {v(vSO)}, 5, {v(t1)}")
    e(f"v_and_b32 {v(t2)}, 16, v0")
    e(f"v_or_b32 {v(vSO)}, {v(vSO)}, {v(t2)}")
    e(f"v_lshrrev_b32 {v(vPO)}, 2, v0")
    e(f"v_lshlrev_b32 {v(vPO)}, 11, {v(vPO)}")
    e(f"v_and_b32 {v(t2)}, 3, v0")
    e(f"v_lshl_or_b32 {v(vPO)}, {v(t2)}, 4, {v(vPO)}")
    e(f"v_lshlrev_b32 {v(vOO)}, 3, {v(t2)}")
    e(f"v_bfe_u32 {v(t2)}, v0, 4, 1")
    e(f"v_lshl_or_b32 {v(vOO)}, {v(t2)}, 2, {v(vOO)}")
    e(f"v_lshrrev_b32 {v(t2)}, 5, v0")
    e(f"v_lshl_or_b32 {v(vOO)}, {v(t2)}, 1, {v(vOO)}")
    e(f"s_lshl_b32 {cK}, {sB}, 17")
    e(f"s_lshl_b32 {sT0}, {sH}, 6")
    e(f"s_add_u32 {cK}, {cK}, {sT0}")
    e(f"s_add_u32 {cWq}, {cK}, 0x8000")
    e(f"s_add_u32 {cW13}, {cK}, 0x10000")
    e(f"s_add_u32 {cW2}, {cK}, 0x18000")
    e(f"s_lshl_b32 {sXO}, s2, 5")
    stamp()
    buildA(0, vS, 0)
    for n in range(32):
        if n + 1 < 32: buildA((n + 1) % 2, vS + (n + 1) // 4, 4 * ((n + 1) % 4))
        s = use(("V", n))
        mfma(vD0, vA[n % 2], s, n == 0)
        release(("V", n))
        pump()
    assert not queue
    e(f"ds_write_b128 {v(vPW)}, {v4(vD0)} offset:{OP}")
    e("s_waitcnt lgkmcnt(0)")
    stamp()
    e("s_barrier")
    for k in range(4):
        e(f"ds_read2st64_b32 {v2(vS+2*k)}, {v(vOA)} offset0:{(OP+2048*k)//256} offset1:{(OP+2048*k+1024)//256}")
    e("s_waitcnt lgkmcnt(0)")
    e(f"v_pk_add_f32 {v2(vS)}, {v2(vS)}, {v2(vS+4)}")
    e(f"v_pk_add_f32 {v2(vS+2)}, {v2(vS+2)}, {v2(vS+6)}")
    e(f"v_pk_add_f32 {v2(vS)}, {v2(vS)}, {v2(vS+2)}")
    e(f"v_add_f32 {v(vS)}, {v(vS)}, {v(vS+1)}")
    e(f"v_cvt_pk_bf16_f32 {v(vDup)}, {v(vS)}, {v(vS)}")
    buildA(0, vDup, 0)
    for n in range(16):
        if n + 1 < 16: buildA((n + 1) % 2, vDup, n + 1)
        s = use(("Wo", n))
        mfma(vD1, vA[n % 2], s, n == 0)
    e("s_mov_b32 exec_hi, 0")
    for r in range(4):
        e(f"v_fmac_f32 {v(vD2+r)}, {v(vG)}, {v(vD1+r)}")
    for r in range(4):
        e(f"v_min_u32 {v(vD2+r)}, -2, {v(vD2+r)}")
    e.vmem(f"buffer_store_dwordx4 {v4(vD2)}, {v(vSO)}, {sWs}, {sOB} offen sc1")
    e(f"s_cmp_lg_u32 {sW}, 0")
    e("s_cbranch_scc1 L_end")
    e("s_mov_b64 exec, -1")
    stamp()
    e(f"s_mov_b32 {sT1}, 0x100000")
    e(f"v_cmp_eq_u32 vcc, 32, {v(vRdy)}")
    e("s_cbranch_vccnz L_poll")
    e(f"s_lshl_b32 {sT0}, {sB}, 5")
    e(f"v_mov_b32 {v(t2)}, 0")
    e.label("L_rdy")
    e(f"s_sub_u32 {sT1}, {sT1}, 1")
    e("s_cbranch_scc1 L_end")
    e(f"buffer_load_dword {v(vRdy)}, {v(t2)}, {sDbg}, {sT0} offen sc1")
    e("s_waitcnt vmcnt(0)")
    e(f"v_cmp_eq_u32 vcc, 32, {v(vRdy)}")
    e("s_cbranch_vccz L_rdy")
    e.label("L_poll")
    P = slots[0]
    e(f"buffer_load_dwordx4 {v4(P)}, {v(vPO)}, {sWs}, {cK} offen sc1")
    e(f"buffer_load_dwordx4 {v4(P+4)}, {v(vPO)}, {sWs}, {cWq} offen sc1")
    e(f"buffer_load_dwordx4 {v4(P+8)}, {v(vPO)}, {sWs}, {cW13} offen sc1")
    e(f"buffer_load_dwordx4 {v4(P+12)}, {v(vPO)}, {sWs}, {cW2} offen sc1")
    e(f"s_sub_u32 {sT1}, {sT1}, 1")
    e("s_cbranch_scc1 L_end")
    e("s_waitcnt vmcnt(0)")
    e(f"v_max3_u32 {v(t2)}, {v(P)}, {v(P+1)}, {v(P+2)}")
    e(f"v_max3_u32 {v(t3)}, {v(P+3)}, {v(P+4)}, {v(P+5)}")
    e(f"v_max3_u32 {v(t2)}, {v(t2)}, {v(P+6)}, {v(P+7)}")
    e(f"v_max3_u32 {v(t3)}, {v(t3)}, {v(P+8)}, {v(P+9)}")
    e(f"v_max3_u32 {v(t2)}, {v(t2)}, {v(P+10)}, {v(P+11)}")
    e(f"v_max3_u32 {v(t3)}, {v(t3)}, {v(P+12)}, {v(P+13)}")
    e(f"v_max3_u32 {v(t2)}, {v(t2)}, {v(P+14)}, {v(P+15)}")
    e(f"v_max_u32 {v(t2)}, {v(t2)}, {v(t3)}")
    e(f"v_cmp_eq_u32 vcc, -1, {v(t2)}")
    e("s_cbranch_vccnz L_poll")
    e(f"v_pk_add_f32 {v2(P)}, {v2(P)}, {v2(P+4)}")
    e(f"v_pk_add_f32 {v2(P+2)}, {v2(P+2)}, {v2(P+6)}")
    e(f"v_pk_add_f32 {v2(P+8)}, {v2(P+8)}, {v2(P+12)}")
    e(f"v_pk_add_f32 {v2(P+10)}, {v2(P+10)}, {v2(P+14)}")
    e(f"v_pk_add_f32 {v2(P)}, {v2(P)}, {v2(P+8)}")
    e(f"v_pk_add_f32 {v2(P+2)}, {v2(P+2)}, {v2(P+10)}")
    e(f"v_permlane32_swap_b32 {v(P)}, {v(P+1)}")
    e(f"v_permlane32_swap_b32 {v(P+2)}, {v(P+3)}")
    e(f"v_add_f32 {v(P)}, {v(P)}, {v(P+1)}")
    e(f"v_add_f32 {v(P+2)}, {v(P+2)}, {v(P+3)}")
    e(f"v_permlane16_swap_b32 {v(P)}, {v(P+2)}")
    e(f"v_add_f32 {v(P)}, {v(P)}, {v(P+2)}")
    rowred("v_add_f32", P)
    e(f"v_cvt_pk_bf16_f32 {v(P)}, {v(P)}, {v(P)}")
    e(f"buffer_store_short {v(P)}, {v(vOO)}, {sOut}, {sXO} offen")
    if STAMPS:
        e("s_waitcnt vmcnt(0)")
        stamp()
        ns = stamp_n[0] + 1
        e("s_waitcnt lgkmcnt(0)")
        e(f"s_add_u32 s{srd(9)}, s{srd(9)}, 0x20000000")
        e(f"s_addc_u32 s{srd(9)+1}, s{srd(9)+1}, 0")
        e(f"s_mul_i32 {sT0}, s2, {8*ns}")
        e(f"v_mov_b32 {v(t2)}, 0")
        e("s_mov_b64 exec, 1")
        for k in range(ns):
            src = 98 if k == 0 else 4 + 2 * (k - 1)
            e(f"v_mov_b32 {v(vT+4)}, s{src}")
            e(f"v_mov_b32 {v(vT+5)}, s{src+1}")
            e(f"buffer_store_dwordx2 {v2(vT+4)}, {v(t2)}, {sWs}, {sT0} offen offset:{8*k}")
            e("s_waitcnt vmcnt(0)")
        print("stamps per wg:", ns, file=sys.stderr)
    e.label("L_end")
    e("s_endpgm")
    e.raw('.section .rodata,"a"')
    e.raw(".p2align 6")
    e.raw(f".amdhsa_kernel {NAME}_kernel")
    e.raw(f"  .amdhsa_next_free_vgpr {NV}")
    e.raw("  .amdhsa_next_free_sgpr 102")
    e.raw(f"  .amdhsa_accum_offset {(NV + 3) // 4 * 4}")
    e.raw("  .amdhsa_group_segment_fixed_size 0")
    e.raw("  .amdhsa_kernarg_size 104")
    e.raw("  .amdhsa_user_sgpr_count 2")
    e.raw("  .amdhsa_user_sgpr_kernarg_segment_ptr 1")
    e.raw("  .amdhsa_system_sgpr_workgroup_id_x 1")
    e.raw("  .amdhsa_float_denorm_mode_32 3")
    e.raw(".end_amdhsa_kernel")
    print(f"NV={NV} nops={E.nops} lines={len(E.lines)}", file=sys.stderr)
    return E.text()

if __name__ == "__main__":
    ap = argparse.ArgumentParser()
    ap.add_argument("out")
    ap.add_argument("--kw", default="{}")
    a = ap.parse_args()
    open(a.out, "w").write(gen(**eval(a.kw)))
```

```python
import sys, argparse
from emit import Emitter
NAME = "gated_mix__sliding_block_cached__glu_gated_swiglu__decode"
HEADER = open("cdna_kernels/" + NAME + ".s.ref").read().split("; Override launch")[0]

DPP = "row_mask:0xf bank_mask:0xf"
LOG2E = "0x3fb8aa3b"

def gen(NSLOT=25, KV="nt", WP="nt", STAMPS=False, KQ=(3,2,3,2,3,2,2), K0=0, TAILV=16, SPIN=0):
    if SPIN: STAMPS = True
    E = Emitter()
    e = E
    QP, UP, OP, QB, GP, ML = 0, 8192, 16384, 24576, 26624, 26688
    LDS = 27648
    sW = "s3"
    sH, sB = "s30", "s31"
    sK, sV, sWq, sWo, sW1, sW3, sW2, sX, sG, sWs, sOut, sDbg = [f"s[{32+4*i}:{35+4*i}]" for i in range(12)]
    def srd(i): return 32 + 4 * i
    cK, cV, cWq, cW13, cWo, cW2 = "s84", "s85", "s86", "s87", "s88", "s89"
    sSG, sCNT, sT0, sT1, sT2, sXO, sOB = "s90", "s91", "s92", "s93", "s94", "s95", "s96"
    nxt = [1]
    def vnew(n=1, align=1):
        while nxt[0] % align: nxt[0] += 1
        r = nxt[0]; nxt[0] += n
        return r
    vL = 0
    vL16 = vnew(); vKo = vnew(); vWqo = vnew(); vW13o = vnew(); vWoo = vnew(); vW2o = vnew()
    vDup = vnew()
    vM = vnew(4, 4)
    vA = [vnew(4, 4), vnew(4, 4)]
    vD0 = vnew(4, 4); vD1 = vnew(4, 4); vD2 = vnew(4, 4)
    vQ = vnew(16, 4)
    vS = vnew(8, 4)
    vT = vnew(8, 4)
    vG = vnew(); vG1 = vnew(); vHd = vnew(); vRdy = vnew()
    slot0 = vnew(0, 4)
    slots = [slot0 + 4 * i for i in range(NSLOT)]
    NV = slot0 + 4 * NSLOT
    def v(r): return f"v{r}"
    def v4(r): return f"v[{r}:{r+3}]"
    def v2(r): return f"v[{r}:{r+1}]"

    stamp_n = [0]
    def stamp():
        if not STAMPS: return
        k = stamp_n[0]; stamp_n[0] += 1
        e(f"s_memrealtime s[{4+2*k}:{5+2*k}]")

    e.raw(HEADER.rstrip())
    e.raw(f"; @launch grid=(256,1,1) block=(512,1,1) lds={LDS}")
    e.raw('.amdgcn_target "amdgcn-amd-amdhsa--gfx950"')
    e.raw(".text")
    e.raw(f".globl {NAME}_kernel")
    e.raw(".p2align 8")
    e.raw(f".type {NAME}_kernel,@function")
    e.raw(f"{NAME}_kernel:")
    if STAMPS: e("s_memrealtime s[98:99]")
    e("s_load_dwordx16 s[4:19], s[0:1], 0")
    e("s_load_dwordx8 s[20:27], s[0:1], 64")
    e("s_load_dwordx2 s[28:29], s[0:1], 96")
    e("s_cmp_ge_u32 s2, 256")
    e("s_cbranch_scc1 L_end")
    t0, t1, t2, t3 = vT, vT + 1, vT + 2, vT + 3
    e(f"v_lshrrev_b32 {v(t0)}, 6, v0")
    e(f"v_and_b32 v0, 63, v0")
    e(f"v_readfirstlane_b32 {sW}, {v(t0)}")
    e(f"v_lshlrev_b32 {v(vL16)}, 4, v0")
    e(f"v_lshrrev_b32 {v(t0)}, 4, v0")
    e(f"v_and_b32 {v(t1)}, 15, v0")
    e(f"v_bfe_u32 {v(t2)}, v0, 2, 2")
    e(f"v_lshlrev_b32 {v(vKo)}, 8, {v(t2)}")
    e(f"v_lshl_or_b32 {v(vKo)}, {v(t0)}, 6, {v(vKo)}")
    e(f"v_and_b32 {v(t2)}, 3, v0")
    e(f"v_lshl_or_b32 {v(vKo)}, {v(t2)}, 4, {v(vKo)}")
    e(f"v_lshlrev_b32 {v(t3)}, 4, {v(t1)}")
    e(f"v_lshl_or_b32 {v(vWqo)}, {v(t0)}, 17, {v(t3)}")
    e(f"v_lshl_or_b32 {v(vWoo)}, {v(t0)}, 15, {v(t3)}")
    e(f"v_mul_u32_u24 {v(vW2o)}, 6144, {v(t0)}")
    e(f"v_add_u32 {v(vW2o)}, {v(vW2o)}, {v(t3)}")
    e(f"v_mul_u32_u24 {v(vW13o)}, 44032, {v(t0)}")
    e(f"v_and_b32 {v(t3)}, 0x70, {v(t3)}")
    e(f"v_add_u32 {v(vW13o)}, {v(vW13o)}, {v(t3)}")
    e(f"s_and_b32 {sH}, s2, 31")
    e(f"s_lshr_b32 {sB}, s2, 5")
    e(f"s_lshl_b32 {sT0}, s2, 20")
    e(f"s_add_u32 {sT0}, {sT0}, 0xC0000")
    e(f"s_lshl_b32 {cK}, {sW}, 12")
    e(f"s_mov_b32 {cV}, {cK}")
    e(f"s_lshl_b32 {cWq}, {sW}, 19")
    e(f"s_mul_i32 {cW13}, {sW}, {64*2752}")
    e(f"s_mul_i32 {sSG}, {sH}, 43")
    e(f"s_add_u32 {sCNT}, {sSG}, 43")
    e(f"s_lshr_b32 {sSG}, {sSG}, 3")
    e(f"s_lshr_b32 {sCNT}, {sCNT}, 3")
    e(f"s_sub_u32 {sCNT}, {sCNT}, {sSG}")
    e(f"s_lshl_b32 {sCNT}, {sCNT}, 3")
    e(f"s_mov_b32 s80, 0x003f003f")
    e(f"s_mov_b32 s81, 0x003f003f")
    e(f"s_mov_b32 s82, 0x3f003f00")
    e(f"s_mov_b32 s83, 0x3f003f00")
    e(f"s_lshl_b32 {sXO}, {sW}, 7")
    e(f"s_lshl_b32 {sOB}, s2, 12")
    e(f"s_lshl_b32 {sT1}, {sW}, 9")
    e(f"s_add_u32 {sOB}, {sOB}, {sT1}")
    e(f"s_lshr_b32 {sT1}, {sW}, 2")
    e(f"s_and_b32 {sT2}, {sW}, 3")
    e(f"s_lshl_b32 {sT2}, {sT2}, 8")
    e(f"s_lshl_b32 {cWo}, {sT1}, 12")
    e(f"s_add_u32 {cWo}, {cWo}, {sT2}")
    e(f"s_mul_i32 {cW2}, {sT1}, {24*1024}")
    e(f"s_add_u32 {cW2}, {cW2}, {sT2}")
    for i in range(12):
        e(f"s_mov_b32 s{srd(i)+3}, 0x20000")
    e(f"s_mov_b32 s{srd(0)+2}, 0x40000")
    e(f"s_mov_b32 s{srd(1)+2}, 0x40000")
    e(f"v_lshlrev_b32 {v(t2)}, 1, v0")
    e(f"v_lshlrev_b32 {v(t3)}, 3, v0")
    e(f"v_mov_b32 {v(vT+4)}, -1")
    e(f"v_mov_b32 {v(vT+5)}, -1")
    e("s_waitcnt lgkmcnt(0)")
    def mk(i, ptr, off, size):
        b = srd(i)
        if off is None:
            e(f"s_mov_b32 s{b}, s{ptr}")
            e(f"s_mov_b32 s{b+1}, s{ptr+1}")
        else:
            e(f"s_add_u32 s{b}, s{ptr}, {off}")
            e(f"s_addc_u32 s{b+1}, s{ptr+1}, 0")
        if size is not None:
            if isinstance(size, int): e(f"s_mov_b32 s{b+2}, {size}")
            else: e(f"s_sub_u32 s{b+2}, {size[0]}, {size[1]}")
    mk(0, 6, sT0, None)

    free = list(slots)
    got = {}
    queue = []
    def do_issue(item):
        kind, n = item
        if kind == "K" or kind == "V":
            s = free.pop(0)
            cur, rs, off = (cK, sK, vKo) if kind == "K" else (cV, sV, vL16)
            if n % 4 == 0 and n > 0: e(f"s_add_u32 {cur}, {cur}, 0x8000")
            i = e.vmem(f"buffer_load_dwordx4 {v4(s)}, {v(off)}, {rs}, {cur} offen offset:{(n%4)*1024} {KV}")
            got[item] = (s, i)
        elif kind == "Wq":
            s = free.pop(0)
            if n > 0: e(f"s_addk_i32 {cWq}, 0x2000")
            i = e.vmem(f"buffer_load_dwordx4 {v4(s)}, {v(vWqo)}, {sWq}, {cWq} offen {WP}")
            got[item] = (s, i)
        elif kind == "W13":
            s0 = free.pop(0); s1 = free.pop(0)
            if n > 0: e(f"s_addk_i32 {cW13}, {2*2752}")
            e("s_mov_b64 exec, s[80:81]")
            e.vmem(f"buffer_load_dwordx4 {v4(s0)}, {v(vW13o)}, {sW1}, {cW13} offen {WP}")
            e.vmem(f"buffer_load_dwordx4 {v4(s1)}, {v(vW13o)}, {sW1}, {cW13} offen offset:2752 {WP}")
            e("s_mov_b64 exec, s[82:83]")
            i0 = e.vmem(f"buffer_load_dwordx4 {v4(s0)}, {v(vW13o)}, {sW3}, {cW13} offen {WP}")
            i1 = e.vmem(f"buffer_load_dwordx4 {v4(s1)}, {v(vW13o)}, {sW3}, {cW13} offen offset:2752 {WP}")
            e("s_mov_b64 exec, -1")
            got[("W13r", 2*n)] = (s0, i0); got[("W13r", 2*n+1)] = (s1, i1)
        elif kind == "Wo":
            s = free.pop(0)
            if n % 4 == 0 and n > 0: e(f"s_addk_i32 {cWo}, 0x2000")
            i = e.vmem(f"buffer_load_dwordx4 {v4(s)}, {v(vWoo)}, {sWo}, {cWo} offen offset:{(n%4)*1024} {WP}")
            got[item] = (s, i)
        elif kind == "W2":
            s = free.pop(0)
            if n == 4: e(f"s_addk_i32 {cW2}, 0x1000")
            i = e.vmem(f"buffer_load_dwordx4 {v4(s)}, {v(vW2o)}, {sW2}, {cW2} offen offset:{(n%4)*1024} {WP}")
            got[item] = (s, i)
        elif kind == "RDY":
            e(f"v_mov_b32 {v(vRdy)}, 0")
            e(f"s_lshl_b32 {sT0}, {sB}, 5")
            i = e.vmem(f"buffer_load_dword {v(vRdy)}, {v(vRdy)}, {sDbg}, {sT0} offen sc1")
            got[item] = (None, i)
    def need(item): return {"W13": 2, "RDY": 0}.get(item[0], 1)
    def pump(limit=None):
        c = 0
        while queue and len(free) >= need(queue[0]) and (limit is None or c < limit):
            do_issue(queue.pop(0)); c += 1
    def use(item):
        s, i = got[item]
        e.wait_vm(i)
        return s
    def release(item):
        free.append(got[item][0])

    kn = 0
    for _ in range(K0):
        queue.append(("K", kn)); kn += 1
    pump()
    mk(9, 28, None, 0x100000)
    e(f"s_lshl_b32 {sT1}, {sB}, 10")
    mk(7, 4, sT1, 1024)
    mk(8, 22, None, 1024)
    id_clear = e.vmem(f"buffer_atomic_swap_x2 {v2(vT+4)}, {v(t3)}, {sWs}, {sOB} offen sc0 sc1")
    id_x = e.vmem(f"buffer_load_ushort {v(vDup)}, {v(t2)}, {sX}, {sXO} offen")
    id_g = e.vmem(f"buffer_load_ushort {v(vG)}, {v(t2)}, {sG}, {sXO} offen")
    e(f"s_lshl_b32 {sT1}, {sH}, 8")
    mk(2, 10, sT1, ("0x400000", sT1))
    e(f"s_lshl_b32 {sT1}, {sSG}, 4")
    mk(4, 16, sT1, (str(512*2752), sT1))
    mk(5, 18, sT1, (str(512*2752), sT1))
    for d in range(8):
        queue.append(("Wq", 2*d)); queue.append(("Wq", 2*d+1)); queue.append(("W13", d))
        if d < 7:
            for _ in range(KQ[d]):
                queue.append(("K", kn)); kn += 1
    while kn < 32:
        queue.append(("K", kn)); kn += 1
    for n in range(6): queue.append(("W2", n))
    vn = 0; wn = 0
    headv = 32 - TAILV
    acc = 0.0
    while vn < headv or wn < 16:
        if vn < headv and (wn >= 16 or vn * 16 <= wn * headv):
            queue.append(("V", vn)); vn += 1
        else:
            queue.append(("Wo", wn)); wn += 1
    queue.append(("RDY", 0))
    while vn < 32:
        queue.append(("V", vn)); vn += 1
    pump(6)
    mk(1, 8, sT0, None)
    e(f"s_lshl_b32 {sT1}, {sH}, 17")
    mk(3, 12, sT1, 0x20000)
    e(f"s_lshl_b32 {sT1}, {sSG}, 13")
    mk(6, 20, sT1, (str(1376*1024), sT1))
    mk(10, 24, None, 8192)
    mk(11, 26, None, 256)
    pump()
    e(f"v_and_b32 {v(t2)}, 1, v0")
    e(f"v_lshlrev_b32 {v(t2)}, 4, {v(t2)}")
    e(f"v_mov_b32 {v(t3)}, 0xffff")
    e(f"v_lshlrev_b32 {v(t2)}, {v(t2)}, {v(t3)}")
    e(f"v_lshrrev_b32 {v(t3)}, 1, {v(t1)}")
    for m in range(4):
        e(f"v_cmp_eq_u32 vcc, {m}, {v(t3)}")
        e(f"v_cndmask_b32 {v(vM+m)}, 0, {v(t2)}, vcc")
    stamp()
    e.wait_vm(id_g)
    e(f"v_lshlrev_b32 {v(t2)}, 16, {v(vDup)}")
    e(f"v_lshlrev_b32 {v(t3)}, 16, {v(vG)}")
    e(f"v_or_b32 {v(vDup)}, {v(vDup)}, {v(t2)}")
    e(f"v_mul_f32 {v(t2)}, {v(t2)}, {v(t3)}")
    e(f"v_cvt_pk_bf16_f32 {v(t2)}, {v(t2)}, {v(t2)}")
    e(f"v_and_b32 {v(t2)}, 0xffff0000, {v(t2)}")
    def rowred(op, r):
        e(f"{op}_dpp {v(r)}, {v(r)}, {v(r)} row_ror:4 {DPP}")
        e(f"{op}_dpp {v(r)}, {v(r)}, {v(r)} row_ror:8 {DPP}")
    def crossred(op, r, tmp):
        e(f"v_mov_b32 {v(tmp)}, {v(r)}")
        e(f"v_permlane16_swap_b32 {v(r)}, {v(tmp)}")
        e(f"{op} {v(r)}, {v(r)}, {v(tmp)}")
        e(f"v_mov_b32 {v(tmp)}, {v(r)}")
        e(f"v_permlane32_swap_b32 {v(r)}, {v(tmp)}")
        e(f"{op} {v(r)}, {v(r)}, {v(tmp)}")
    e(f"v_add_f32_dpp {v(t2)}, {v(t2)}, {v(t2)} quad_perm:[1,0,3,2] {DPP}")
    e(f"v_add_f32_dpp {v(t2)}, {v(t2)}, {v(t2)} quad_perm:[2,3,0,1] {DPP}")
    rowred("v_add_f32", t2)
    crossred("v_add_f32", t2, t3)
    e(f"s_lshl_b32 {sT0}, {sW}, 2")
    e(f"v_mov_b32 {v(t3)}, {sT0}")
    e("s_mov_b64 exec, 1")
    e(f"ds_write_b32 {v(t3)}, {v(t2)} offset:{GP}")
    e("s_mov_b64 exec, -1")

    def buildA(buf, src, lane):
        for m in range(4):
            e(f"v_and_b32_dpp {v(vA[buf]+m)}, {v(src)}, {v(vM+m)} row_newbcast:{lane} {DPP}")
    def mfma(D, A, B, first):
        e(f"v_mfma_f32_16x16x32_bf16 {v4(D)}, {v4(A)}, {v4(B)}, {'0' if first else v4(D)}")

    for n in range(16):
        buildA(n % 2, vDup, n)
        s = use(("Wq", n))
        mfma(vD0, vA[n % 2], s, n == 0)
        s = use(("W13r", n))
        mfma(vD1, vA[n % 2], s, n == 0)
        release(("Wq", n)); release(("W13r", n))
        pump()
    e(f"s_lshl_b32 {sT0}, {sW}, 10")
    e(f"v_add_u32 {v(t0)}, {sT0}, {v(vL16)}")
    vPW = t0
    e(f"ds_write_b128 {v(vPW)}, {v4(vD0)} offset:{QP}")
    e(f"ds_write_b128 {v(vPW)}, {v4(vD1)} offset:{UP}")
    e("s_waitcnt lgkmcnt(0)")
    stamp()
    e("s_barrier")
    e(f"s_cmp_lg_u32 {sW}, 0")
    e("s_cbranch_scc1 L_nosig")
    e(f"v_mov_b32 {v(t2)}, 0")
    e(f"v_mov_b32 {v(t3)}, 1")
    e(f"s_lshl_b32 {sT0}, {sB}, 5")
    e("s_mov_b64 exec, 1")
    e.vmem(f"buffer_atomic_add {v(t3)}, {v(t2)}, {sDbg}, {sT0} offen sc1", counted=False)
    e("s_mov_b64 exec, -1")
    e.label("L_nosig")
    e(f"v_lshlrev_b32 {v(t2)}, 3, v0")
    for k in range(4):
        e(f"ds_read2st64_b64 v[{vQ+4*k}:{vQ+4*k+3}], {v(t2)} offset0:{(QP + 2048*k)//512} offset1:{(QP + 2048*k + 1024)//512}")
    e(f"v_mov_b32 {v(t3)}, 0")
    e(f"ds_read_b128 {v4(vS)}, {v(t3)} offset:{GP}")
    e(f"ds_read_b128 {v4(vS+4)}, {v(t3)} offset:{GP+16}")
    e(f"v_bfe_u32 {v(t2)}, v0, 1, 4")
    e(f"v_lshlrev_b32 {v(t2)}, 4, {v(t2)}")
    e(f"v_lshrrev_b32 {v(t3)}, 5, v0")
    e(f"v_lshl_or_b32 {v(t2)}, {v(t3)}, 3, {v(t2)}")
    e(f"v_and_b32 {v(t3)}, 1, v0")
    e(f"v_lshl_or_b32 {v(t2)}, {v(t3)}, 2, {v(t2)}")
    e(f"s_lshl_b32 {sT0}, {sW}, 8")
    e(f"v_add_u32 {v(t2)}, {sT0}, {v(t2)}")
    e(f"v_lshrrev_b32 {v(t3)}, 4, v0")
    e(f"v_lshlrev_b32 {v(t3)}, 6, {v(t3)}")
    e(f"v_and_b32 {v(vT+4)}, 3, v0")
    e(f"v_lshl_or_b32 {v(t3)}, {v(vT+4)}, 4, {v(t3)}")
    e(f"v_add_u32 {v(t3)}, {sT0}, {v(t3)}")
    e("s_waitcnt lgkmcnt(0)")
    for st in (8, 4, 2):
        for k in range(0, st, 2):
            e(f"v_pk_add_f32 {v2(vQ+k)}, {v2(vQ+k)}, {v2(vQ+k+st)}")
    e(f"v_cvt_pk_bf16_f32 {v(vQ)}, {v(vQ)}, {v(vQ+1)}")
    e(f"ds_write_b32 {v(t2)}, {v(vQ)} offset:{QB}")
    e("s_waitcnt lgkmcnt(0)")
    e(f"ds_read_b128 {v4(vA[0])}, {v(t3)} offset:{QB}")
    e(f"v_lshrrev_b32 {v(t2)}, 4, v0")
    e(f"v_mul_u32_u24 {v(t2)}, 6, {v(t2)}")
    e(f"v_add_u32 {v(t2)}, {v(t2)}, {v(t1)}")
    e(f"s_lshr_b32 {sT0}, {sW}, 2")
    e(f"s_mul_i32 {sT0}, {sT0}, 24")
    e(f"v_add_u32 {v(t2)}, {sT0}, {v(t2)}")
    e(f"v_bfe_u32 {v(t3)}, {v(t2)}, 2, 1")
    e(f"v_lshlrev_b32 {v(t3)}, 8, {v(t3)}")
    e(f"v_lshrrev_b32 {v(vT+4)}, 3, {v(t2)}")
    e(f"v_lshl_or_b32 {v(t3)}, {v(vT+4)}, 4, {v(t3)}")
    e(f"v_and_b32 {v(vT+4)}, 3, {v(t2)}")
    e(f"v_lshl_or_b32 {v(t3)}, {v(vT+4)}, 2, {v(t3)}")
    e(f"v_add_u32 {v(vT+4)}, 128, {v(t3)}")
    for k in range(4):
        e(f"ds_read2st64_b32 {v2(vQ+2*k)}, {v(t3)} offset0:{(UP+2048*k)//256} offset1:{(UP+2048*k+1024)//256}")
    for k in range(4):
        e(f"ds_read2st64_b32 {v2(vQ+8+2*k)}, {v(vT+4)} offset0:{(UP+2048*k)//256} offset1:{(UP+2048*k+1024)//256}")
    e(f"v_cmp_gt_u32 vcc, {sCNT}, {v(t2)}")
    def rbf(r):
        e(f"v_cvt_pk_bf16_f32 {v(r)}, {v(r)}, {v(r)}")
        e(f"v_and_b32 {v(r)}, 0xffff0000, {v(r)}")
    def sigm(dst, src):
        e(f"v_mul_f32 {v(dst)}, 0xbfb8aa3b, {v(src)}")
        e(f"v_exp_f32 {v(dst)}, {v(dst)}")
        e(f"v_add_f32 {v(dst)}, 1.0, {v(dst)}")
        e(f"v_rcp_f32 {v(dst)}, {v(dst)}")
    for st in (4, 2):
        for k in range(0, st, 2):
            e(f"v_pk_add_f32 {v2(vS+k)}, {v2(vS+k)}, {v2(vS+k+st)}")
    e(f"v_add_f32 {v(vS)}, {v(vS)}, {v(vS+1)}")
    rbf(vS)
    sigm(vG, vS)
    rbf(vG)
    e(f"v_sub_f32 {v(vG1)}, 1.0, {v(vG)}")
    rbf(vG1)
    e("s_waitcnt lgkmcnt(0)")
    for base in (vQ, vQ + 8):
        for st in (4, 2):
            for k in range(0, st, 2):
                e(f"v_pk_add_f32 {v2(base+k)}, {v2(base+k)}, {v2(base+k+st)}")
        e(f"v_add_f32 {v(base)}, {v(base)}, {v(base+1)}")
        rbf(base)
    sigm(vHd, vQ)
    e(f"v_mul_f32 {v(vHd)}, {v(vHd)}, {v(vQ)}")
    rbf(vHd)
    e(f"v_mul_f32 {v(vHd)}, {v(vHd)}, {v(vQ+8)}")
    e(f"v_cvt_pk_bf16_f32 {v(vHd)}, {v(vHd)}, {v(vHd)}")
    e(f"v_cndmask_b32 {v(vHd)}, 0, {v(vHd)}, vcc")
    e(f"v_bfe_u32 {v(t2)}, v0, 2, 2")
    for u in range(4):
        e(f"v_cmp_eq_u32 vcc, {u}, {v(t2)}")
        for m in range(4):
            e(f"v_cndmask_b32 {v(vQ+4*u+m)}, 0, {v(vA[0]+m)}, vcc")
    stamp()
    def score_reduce(gi):
        D = (vD0, vD1)[gi % 2]
        r = vS + gi
        e(f"v_mov_b32_dpp {v(r)}, {v(D)} quad_perm:[0,0,0,0] {DPP}")
        e(f"v_mov_b32_dpp {v(vT+6)}, {v(D+1)} quad_perm:[1,1,1,1] {DPP}")
        e(f"v_mov_b32_dpp {v(vT+7)}, {v(D+2)} quad_perm:[2,2,2,2] {DPP}")
        e(f"v_add_f32_dpp {v(r)}, {v(D+3)}, {v(r)} quad_perm:[3,3,3,3] {DPP}")
        e(f"v_add_f32 {v(vT+6)}, {v(vT+6)}, {v(vT+7)}")
        e(f"v_add_f32 {v(r)}, {v(r)}, {v(vT+6)}")
    for gi in range(8):
        D = (vD0, vD1)[gi % 2]
        for u in range(4):
            s = use(("K", 4*gi+u))
            mfma(D, s, vQ + 4*u, u == 0)
        for u in range(4): release(("K", 4*gi+u))
        pump()
        if gi > 0: score_reduce(gi - 1)
    for n in range(6):
        buildA(n % 2, vHd, n)
        s = use(("W2", n))
        mfma(vD2, vA[n % 2], s, n == 0)
        release(("W2", n))
    pump()
    score_reduce(7)
    e(f"s_mov_b32 {sT0}, 0x3db504f3")
    for k in range(0, 8, 2):
        a, b = vS + k, vS + k + 1
        e(f"v_cvt_pk_bf16_f32 {v(b)}, {v(a)}, {v(b)}")
        e(f"v_lshlrev_b32 {v(a)}, 16, {v(b)}")
        e(f"v_and_b32 {v(b)}, 0xffff0000, {v(b)}")
        e(f"v_mul_f32 {v(a)}, {sT0}, {v(a)}")
        e(f"v_mul_f32 {v(b)}, {sT0}, {v(b)}")
        e(f"v_cvt_pk_bf16_f32 {v(b)}, {v(a)}, {v(b)}")
        e(f"v_lshlrev_b32 {v(a)}, 16, {v(b)}")
        e(f"v_and_b32 {v(b)}, 0xffff0000, {v(b)}")
    vm_, vl_ = vT + 4, vT + 5
    e(f"v_max3_f32 {v(vm_)}, {v(vS)}, {v(vS+1)}, {v(vS+2)}")
    e(f"v_max3_f32 {v(vm_)}, {v(vm_)}, {v(vS+3)}, {v(vS+4)}")
    e(f"v_max3_f32 {v(vm_)}, {v(vm_)}, {v(vS+5)}, {v(vS+6)}")
    e(f"v_max_f32 {v(vm_)}, {v(vm_)}, {v(vS+7)}")
    rowred("v_max_f32", vm_)
    crossred("v_max_f32", vm_, t3)
    for k in range(8):
        e(f"v_sub_f32 {v(vS+k)}, {v(vS+k)}, {v(vm_)}")
    for k in range(8):
        e(f"v_mul_f32 {v(vS+k)}, {LOG2E}, {v(vS+k)}")
    for k in range(8):
        e(f"v_exp_f32 {v(vS+k)}, {v(vS+k)}")
    for r in range(4):
        e(f"v_mul_f32 {v(vD2+r)}, {v(vG1)}, {v(vD2+r)}")
    e(f"v_pk_add_f32 {v2(vA[0])}, {v2(vS)}, {v2(vS+2)}")
    e(f"v_pk_add_f32 {v2(vA[0]+2)}, {v2(vS+4)}, {v2(vS+6)}")
    e(f"v_pk_add_f32 {v2(vA[0])}, {v2(vA[0])}, {v2(vA[0]+2)}")
    e(f"v_add_f32 {v(vl_)}, {v(vA[0])}, {v(vA[0]+1)}")
    rowred("v_add_f32", vl_)
    crossred("v_add_f32", vl_, t3)
    e(f"s_lshl_b32 {sT0}, {sW}, 3")
    e(f"v_mov_b32 {v(t3)}, {sT0}")
    e("s_mov_b64 exec, 1")
    e(f"ds_write_b64 {v(t3)}, {v2(vm_)} offset:{ML}")
    e("s_mov_b64 exec, -1")
    e("s_waitcnt lgkmcnt(0)")
    stamp()
    e("s_barrier")
    e(f"v_mov_b32 {v(t3)}, 0")
    for k in range(4):
        e(f"ds_read_b128 {v4(vQ+4*k)}, {v(t3)} offset:{ML+16*k}")
    e("s_waitcnt lgkmcnt(0)")
    e(f"v_max3_f32 {v(t2)}, {v(vQ)}, {v(vQ+2)}, {v(vQ+4)}")
    e(f"v_max3_f32 {v(t2)}, {v(t2)}, {v(vQ+6)}, {v(vQ+8)}")
    e(f"v_max3_f32 {v(t2)}, {v(t2)}, {v(vQ+10)}, {v(vQ+12)}")
    e(f"v_max_f32 {v(t2)}, {v(t2)}, {v(vQ+14)}")
    for k in range(8): e(f"v_sub_f32 {v(vQ+2*k)}, {v(vQ+2*k)}, {v(t2)}")
    e(f"v_sub_f32 {v(vm_)}, {v(vm_)}, {v(t2)}")
    for k in range(8): e(f"v_mul_f32 {v(vQ+2*k)}, {LOG2E}, {v(vQ+2*k)}")
    e(f"v_mul_f32 {v(vm_)}, {LOG2E}, {v(vm_)}")
    for k in range(8): e(f"v_exp_f32 {v(vQ+2*k)}, {v(vQ+2*k)}")
    e(f"v_exp_f32 {v(vm_)}, {v(vm_)}")
    e(f"v_mul_f32 {v(vl_)}, {v(vQ)}, {v(vQ+1)}")
    for k in range(1, 8): e(f"v_fmac_f32 {v(vl_)}, {v(vQ+2*k)}, {v(vQ+2*k+1)}")
    e(f"v_rcp_f32 {v(vl_)}, {v(vl_)}")
    e(f"v_mul_f32 {v(vm_)}, {v(vm_)}, {v(vl_)}")
    for k in range(8): e(f"v_mul_f32 {v(vS+k)}, {v(vS+k)}, {v(vm_)}")
    for k in range(8): e(f"v_cvt_pk_bf16_f32 {v(vS+k)}, {v(vS+k)}, {v(vS+k)}")
    for k in range(4): free.append(vQ + 4*k)
    pump()
    vOA, vSO, vPO, vOO = vKo, vWqo, vW13o, vW2o
    assert not any(it[0] in ("K", "Wq", "W13", "W2") for it in queue)
    e(f"s_lshr_b32 {sT0}, {sW}, 2")
    e(f"s_lshl_b32 {sT0}, {sT0}, 8")
    e(f"v_lshlrev_b32 {v(vOA)}, 2, v0")
    e(f"v_add_u32 {v(vOA)}, {sT0}, {v(vOA)}")
    e(f"v_lshlrev_b32 {v(vSO)}, 5, {v(t1)}")
    e(f"v_and_b32 {v(t2)}, 16, v0")
    e(f"v_or_b32 {v(vSO)}, {v(vSO)}, {v(t2)}")
    e(f"v_lshrrev_b32 {v(vPO)}, 2, v0")
    e(f"v_lshlrev_b32 {v(vPO)}, 11, {v(vPO)}")
    e(f"v_and_b32 {v(t2)}, 3, v0")
    e(f"v_lshl_or_b32 {v(vPO)}, {v(t2)}, 4, {v(vPO)}")
    e(f"v_lshlrev_b32 {v(vOO)}, 3, {v(t2)}")
    e(f"v_bfe_u32 {v(t2)}, v0, 4, 1")
    e(f"v_lshl_or_b32 {v(vOO)}, {v(t2)}, 2, {v(vOO)}")
    e(f"v_lshrrev_b32 {v(t2)}, 5, v0")
    e(f"v_lshl_or_b32 {v(vOO)}, {v(t2)}, 1, {v(vOO)}")
    e(f"s_lshl_b32 {cK}, {sB}, 17")
    e(f"s_lshl_b32 {sT0}, {sH}, 6")
    e(f"s_add_u32 {cK}, {cK}, {sT0}")
    e(f"s_add_u32 {cWq}, {cK}, 0x8000")
    e(f"s_add_u32 {cW13}, {cK}, 0x10000")
    e(f"s_add_u32 {cW2}, {cK}, 0x18000")
    e(f"s_lshl_b32 {sXO}, s2, 5")
    stamp()
    buildA(0, vS, 0)
    for n in range(32):
        if n + 1 < 32: buildA((n + 1) % 2, vS + (n + 1) // 4, 4 * ((n + 1) % 4))
        s = use(("V", n))
        mfma(vD0, vA[n % 2], s, n == 0)
        release(("V", n))
        pump()
    assert not queue
    e(f"ds_write_b128 {v(vPW)}, {v4(vD0)} offset:{OP}")
    e("s_waitcnt lgkmcnt(0)")
    stamp()
    e("s_barrier")
    for k in range(4):
        e(f"ds_read2st64_b32 {v2(vS+2*k)}, {v(vOA)} offset0:{(OP+2048*k)//256} offset1:{(OP+2048*k+1024)//256}")
    e("s_waitcnt lgkmcnt(0)")
    e(f"v_pk_add_f32 {v2(vS)}, {v2(vS)}, {v2(vS+4)}")
    e(f"v_pk_add_f32 {v2(vS+2)}, {v2(vS+2)}, {v2(vS+6)}")
    e(f"v_pk_add_f32 {v2(vS)}, {v2(vS)}, {v2(vS+2)}")
    e(f"v_add_f32 {v(vS)}, {v(vS)}, {v(vS+1)}")
    e(f"v_cvt_pk_bf16_f32 {v(vDup)}, {v(vS)}, {v(vS)}")
    buildA(0, vDup, 0)
    for n in range(16):
        if n + 1 < 16: buildA((n + 1) % 2, vDup, n + 1)
        s = use(("Wo", n))
        mfma(vD1, vA[n % 2], s, n == 0)
    e("s_mov_b32 exec_hi, 0")
    for r in range(4):
        e(f"v_fmac_f32 {v(vD2+r)}, {v(vG)}, {v(vD1+r)}")
    for r in range(4):
        e(f"v_min_u32 {v(vD2+r)}, -2, {v(vD2+r)}")
    e.vmem(f"buffer_store_dwordx4 {v4(vD2)}, {v(vSO)}, {sWs}, {sOB} offen sc1")
    e(f"s_cmp_lg_u32 {sW}, 0")
    e("s_cbranch_scc1 L_end")
    e("s_mov_b64 exec, -1")
    stamp()
    e(f"s_mov_b32 {sT1}, 0x100000")
    e(f"v_cmp_le_u32 vcc, 32, {v(vRdy)}")
    e("s_cbranch_vccnz L_poll")
    e(f"s_lshl_b32 {sT0}, {sB}, 5")
    e(f"v_mov_b32 {v(t2)}, 0")
    e.label("L_rdy")
    e(f"s_sub_u32 {sT1}, {sT1}, 1")
    e("s_cbranch_scc1 L_end")
    e(f"buffer_load_dword {v(vRdy)}, {v(t2)}, {sDbg}, {sT0} offen sc1")
    e("s_waitcnt vmcnt(0)")
    e(f"v_cmp_le_u32 vcc, 32, {v(vRdy)}")
    e("s_cbranch_vccz L_rdy")
    e.label("L_poll")
    P = slots[0]
    e(f"buffer_load_dwordx4 {v4(P)}, {v(vPO)}, {sWs}, {cK} offen sc1")
    e(f"buffer_load_dwordx4 {v4(P+4)}, {v(vPO)}, {sWs}, {cWq} offen sc1")
    e(f"buffer_load_dwordx4 {v4(P+8)}, {v(vPO)}, {sWs}, {cW13} offen sc1")
    e(f"buffer_load_dwordx4 {v4(P+12)}, {v(vPO)}, {sWs}, {cW2} offen sc1")
    e(f"s_sub_u32 {sT1}, {sT1}, 1")
    e("s_cbranch_scc1 L_end")
    e("s_waitcnt vmcnt(0)")
    e(f"v_max3_u32 {v(t2)}, {v(P)}, {v(P+1)}, {v(P+2)}")
    e(f"v_max3_u32 {v(t3)}, {v(P+3)}, {v(P+4)}, {v(P+5)}")
    e(f"v_max3_u32 {v(t2)}, {v(t2)}, {v(P+6)}, {v(P+7)}")
    e(f"v_max3_u32 {v(t3)}, {v(t3)}, {v(P+8)}, {v(P+9)}")
    e(f"v_max3_u32 {v(t2)}, {v(t2)}, {v(P+10)}, {v(P+11)}")
    e(f"v_max3_u32 {v(t3)}, {v(t3)}, {v(P+12)}, {v(P+13)}")
    e(f"v_max3_u32 {v(t2)}, {v(t2)}, {v(P+14)}, {v(P+15)}")
    e(f"v_max_u32 {v(t2)}, {v(t2)}, {v(t3)}")
    e(f"v_cmp_eq_u32 vcc, -1, {v(t2)}")
    e("s_cbranch_vccnz L_poll")
    e(f"v_pk_add_f32 {v2(P)}, {v2(P)}, {v2(P+4)}")
    e(f"v_pk_add_f32 {v2(P+2)}, {v2(P+2)}, {v2(P+6)}")
    e(f"v_pk_add_f32 {v2(P+8)}, {v2(P+8)}, {v2(P+12)}")
    e(f"v_pk_add_f32 {v2(P+10)}, {v2(P+10)}, {v2(P+14)}")
    e(f"v_pk_add_f32 {v2(P)}, {v2(P)}, {v2(P+8)}")
    e(f"v_pk_add_f32 {v2(P+2)}, {v2(P+2)}, {v2(P+10)}")
    e(f"v_permlane32_swap_b32 {v(P)}, {v(P+1)}")
    e(f"v_permlane32_swap_b32 {v(P+2)}, {v(P+3)}")
    e(f"v_add_f32 {v(P)}, {v(P)}, {v(P+1)}")
    e(f"v_add_f32 {v(P+2)}, {v(P+2)}, {v(P+3)}")
    e(f"v_permlane16_swap_b32 {v(P)}, {v(P+2)}")
    e(f"v_add_f32 {v(P)}, {v(P)}, {v(P+2)}")
    rowred("v_add_f32", P)
    e(f"v_cvt_pk_bf16_f32 {v(P)}, {v(P)}, {v(P)}")
    e(f"buffer_store_short {v(P)}, {v(vOO)}, {sOut}, {sXO} offen")
    if STAMPS:
        e("s_waitcnt vmcnt(0)")
        stamp()
        ns = stamp_n[0] + 1
        e("s_waitcnt lgkmcnt(0)")
        if SPIN:
            src = 4 + 2 * (SPIN - 1); last = 4 + 2 * (ns - 2)
            e(f"s_sub_u32 {sT0}, s{src}, s98")
            e(f"s_mul_i32 {sT0}, {sT0}, 10")
            e.label("L_spin")
            e("s_memrealtime s[100:101]")
            e("s_waitcnt lgkmcnt(0)")
            e(f"s_sub_u32 {sT1}, s100, s{last}")
            e(f"s_cmp_lt_u32 {sT1}, {sT0}")
            e("s_cbranch_scc1 L_spin")
            e("s_endpgm")
        e(f"s_add_u32 s{srd(9)}, s{srd(9)}, 0x20000000")
        e(f"s_addc_u32 s{srd(9)+1}, s{srd(9)+1}, 0")
        e(f"s_mul_i32 {sT0}, s2, {8*ns}")
        e(f"v_mov_b32 {v(t2)}, 0")
        e("s_mov_b64 exec, 1")
        for k in range(ns):
            src = 98 if k == 0 else 4 + 2 * (k - 1)
            e(f"v_mov_b32 {v(vT+4)}, s{src}")
            e(f"v_mov_b32 {v(vT+5)}, s{src+1}")
            e(f"buffer_store_dwordx2 {v2(vT+4)}, {v(t2)}, {sWs}, {sT0} offen offset:{8*k}")
            e("s_waitcnt vmcnt(0)")
        print("stamps per wg:", ns, file=sys.stderr)
    e.label("L_end")
    e("s_endpgm")
    e.raw('.section .rodata,"a"')
    e.raw(".p2align 6")
    e.raw(f".amdhsa_kernel {NAME}_kernel")
    e.raw(f"  .amdhsa_next_free_vgpr {NV}")
    e.raw("  .amdhsa_next_free_sgpr 102")
    e.raw(f"  .amdhsa_accum_offset {(NV + 3) // 4 * 4}")
    e.raw("  .amdhsa_group_segment_fixed_size 0")
    e.raw("  .amdhsa_kernarg_size 104")
    e.raw("  .amdhsa_user_sgpr_count 2")
    e.raw("  .amdhsa_user_sgpr_kernarg_segment_ptr 1")
    e.raw("  .amdhsa_system_sgpr_workgroup_id_x 1")
    e.raw("  .amdhsa_float_denorm_mode_32 3")
    e.raw(".end_amdhsa_kernel")
    print(f"NV={NV} nops={E.nops} lines={len(E.lines)}", file=sys.stderr)
    return E.text()

if __name__ == "__main__":
    ap = argparse.ArgumentParser()
    ap.add_argument("out")
    ap.add_argument("--kw", default="{}")
    a = ap.parse_args()
    open(a.out, "w").write(gen(**eval(a.kw)))
```

```python
import sys, argparse
from emit import Emitter
NAME = "gated_mix__sliding_block_cached__glu_gated_swiglu__decode"
HEADER = open("cdna_kernels/" + NAME + ".s.ref").read().split("; Override launch")[0]
DPP = "row_mask:0xf bank_mask:0xf"
LOG2E = "0x3fb8aa3b"

def v(r): return f"v{r}"
def v4(r): return f"v[{r}:{r+3}]"
def v2(r): return f"v[{r}:{r+1}]"

def gen(D=6, DW=3, IB1=44, BUD=300, KV="nt", WP="", TP="nt", STAMPS=False, SPIN=0, SKIP=(), NV=256, STW=0, PRIO=2,
        SPINMAX=0x40000, FORCE_SLOW=False, NPRE=2):
    if SPIN: STAMPS = True
    e = Emitter()
    QO = 0
    ML = 256
    LI = 320
    GG = 328
    FB = 512
    OP = 1024
    TB = 5120
    T2 = TB + 32768
    LDS = T2 + 8192
    EO, HF, BOX_H, BOX_P, BOX_A, BOX_B, WSZ = 0, 0x1000, 0x10000, 0x100000, 0x300000, 0x400000, 0x500000
    sW = "s3"; sH, sB = "s30", "s31"
    def srd(i): return 32 + 4 * i
    def S(i): return f"s[{srd(i)}:{srd(i)+3}]"
    iK, iV, iOut, iG, iTl, iWo, iW2, iX, iWs = range(9)
    sK, sV, sOut, sG, sTl, sWo, sW2, sX, sWs = [S(i) for i in range(9)]
    c0, c1, c2, c3 = "s68", "s69", "s70", "s71"
    sSG, sCNT, sT0, sT1, sT2, sC, sOB, sSpin, sStr, sT3, sSlow = [f"s{72+i}" for i in range(11)]
    TAG = 84; OWN = 86
    sTag = f"s[{TAG}:{TAG+1}]"; sOwn = f"s[{OWN}:{OWN+1}]"
    M0, M1 = "s[88:89]", "s[90:91]"

    stamp_n = [0]
    def stamp(role):
        if not STAMPS or role != (1 if STW >= 4 else 0): return
        k = stamp_n[0]; stamp_n[0] += 1
        assert k < 12
        e(f"s_memrealtime s[{4+2*k}:{5+2*k}]")
    def mk(i, ptr, off, size):
        b = srd(i)
        if off is None:
            e(f"s_mov_b32 s{b}, s{ptr}"); e(f"s_mov_b32 s{b+1}, s{ptr+1}")
        else:
            e(f"s_add_u32 s{b}, s{ptr}, {off}"); e(f"s_addc_u32 s{b+1}, s{ptr+1}, 0")
        if size is not None:
            if isinstance(size, int): e(f"s_mov_b32 s{b+2}, {size}")
            else: e(f"s_sub_u32 s{b+2}, {size[0]}, {size[1]}")
            e(f"s_mov_b32 s{b+3}, 0x20000")
    def mfma(Dr, A, B, first):
        e(f"v_mfma_f32_16x16x32_bf16 {v4(Dr)}, {v4(A)}, {v4(B)}, {'0' if first else v4(Dr)}")
    def rbf(r):
        e(f"v_cvt_pk_bf16_f32 {v(r)}, {v(r)}, {v(r)}")
        e(f"v_and_b32 {v(r)}, 0xffff0000, {v(r)}")
    def sigm(dst, src):
        e(f"v_mul_f32 {v(dst)}, 0xbfb8aa3b, {v(src)}")
        e(f"v_exp_f32 {v(dst)}, {v(dst)}")
        e(f"v_add_f32 {v(dst)}, 1.0, {v(dst)}")
        e(f"v_rcp_f32 {v(dst)}, {v(dst)}")
    def wavered(op, r, tmp):
        e(f"{op}_dpp {v(r)}, {v(r)}, {v(r)} quad_perm:[1,0,3,2] {DPP}")
        e(f"{op}_dpp {v(r)}, {v(r)}, {v(r)} quad_perm:[2,3,0,1] {DPP}")
        e(f"{op}_dpp {v(r)}, {v(r)}, {v(r)} row_ror:4 {DPP}")
        e(f"{op}_dpp {v(r)}, {v(r)}, {v(r)} row_ror:8 {DPP}")
        e(f"v_mov_b32 {v(tmp)}, {v(r)}")
        e(f"v_permlane16_swap_b32 {v(r)}, {v(tmp)}")
        e(f"{op} {v(r)}, {v(r)}, {v(tmp)}")
        e(f"v_mov_b32 {v(tmp)}, {v(r)}")
        e(f"v_permlane32_swap_b32 {v(r)}, {v(tmp)}")
        e(f"{op} {v(r)}, {v(r)}, {v(tmp)}")
    def spin_guard():
        e(f"s_sub_u32 {sSpin}, {sSpin}, 1")
        e("s_cbranch_scc1 L_end")
    def check8(P, ta, tb, lbl):
        e(f"v_max3_u32 {v(ta)}, {v(P)}, {v(P+1)}, {v(P+2)}")
        e(f"v_max3_u32 {v(tb)}, {v(P+3)}, {v(P+4)}, {v(P+5)}")
        e(f"v_max3_u32 {v(ta)}, {v(ta)}, {v(P+6)}, {v(P+7)}")
        e(f"v_max_u32 {v(ta)}, {v(ta)}, {v(tb)}")
        e(f"v_cmp_eq_u32 vcc, -1, {v(ta)}")
        e(f"s_cbranch_vccnz {lbl}")
    def poll4(P, voff, soffs, lbl):
        e.drain_hazards()
        e.label(lbl)
        for u in range(4):
            so, imm = soffs[u]
            e(f"buffer_load_dwordx4 {v4(P+4*u)}, {v(voff)}, {sWs}, {so} offen offset:{imm} sc1")
        spin_guard()
        e.wait_vm_all()
        e(f"v_cmp_ne_u64 vcc, {sTag}, {v2(P+2)}")
        e(f"v_cmp_ne_u64 {M0}, {sTag}, {v2(P+6)}")
        e(f"v_cmp_ne_u64 {M1}, {sTag}, {v2(P+10)}")
        e(f"s_or_b64 {M0}, {M0}, vcc")
        e(f"v_cmp_ne_u64 vcc, {sTag}, {v2(P+14)}")
        e(f"s_or_b64 {M0}, {M0}, {M1}")
        e(f"s_or_b64 {M0}, {M0}, vcc")
        e(f"s_cbranch_scc1 {lbl}")
    def sum4(P):
        e(f"v_pk_add_f32 {v2(P)}, {v2(P)}, {v2(P+4)}")
        e(f"v_pk_add_f32 {v2(P+8)}, {v2(P+8)}, {v2(P+12)}")
        e(f"v_pk_add_f32 {v2(P)}, {v2(P)}, {v2(P+8)}")
    def load_tag():
        e(f"s_load_dwordx2 {sTag}, s[28:29], {EO}")
    def make_tag():
        e(f"s_add_u32 s{TAG}, s{TAG}, 0x7f4a7c15")
        e(f"s_addc_u32 s{TAG+1}, s{TAG+1}, 0x9e3779b9")
    def finish_stamps(ta, role):
        e("s_waitcnt vmcnt(0)")
        stamp(role)
        ns = stamp_n[0] + 1
        e("s_waitcnt lgkmcnt(0)")
        if SPIN:
            src = 4 + 2 * (SPIN - 1); last = 4 + 2 * (ns - 2)
            e(f"s_sub_u32 {sT0}, s{src}, s98")
            e(f"s_mul_i32 {sT0}, {sT0}, 10")
            e.label("L_spin")
            e("s_memrealtime s[100:101]"); e("s_waitcnt lgkmcnt(0)")
            e(f"s_sub_u32 {sT1}, s100, s{last}"); e(f"s_cmp_lt_u32 {sT1}, {sT0}")
            e("s_cbranch_scc1 L_spin"); e("s_endpgm")
        e(f"s_add_u32 s{srd(iWs)}, s{srd(iWs)}, 0x20000000")
        e(f"s_addc_u32 s{srd(iWs)+1}, s{srd(iWs)+1}, 0")
        e(f"s_mul_i32 {sT0}, s2, {8*ns}")
        e(f"v_mov_b32 {v(ta)}, 0")
        e("s_mov_b64 exec, 1")
        for k in range(ns):
            src = 98 if k == 0 else 4 + 2 * (k - 1)
            e(f"v_mov_b32 {v(ta+2)}, s{src}")
            e(f"v_mov_b32 {v(ta+3)}, s{src+1}")
            e(f"buffer_store_dwordx2 {v2(ta+2)}, {v(ta)}, {sWs}, {sT0} offen offset:{8*k}")
            e("s_waitcnt vmcnt(0)")
        print("stamps per wg:", ns, file=sys.stderr)

    e.raw(HEADER.rstrip())
    e.raw(f"; @launch grid=(256,1,1) block=(512,1,1) lds={LDS}")
    e.raw('.amdgcn_target "amdgcn-amd-amdhsa--gfx950"')
    e.raw(".text"); e.raw(f".globl {NAME}_kernel"); e.raw(".p2align 8")
    e.raw(f".type {NAME}_kernel,@function"); e.raw(f"{NAME}_kernel:")
    if STAMPS: e("s_memrealtime s[98:99]")
    e("s_load_dwordx16 s[4:19], s[0:1], 0")
    e("s_load_dwordx8 s[20:27], s[0:1], 64")
    e("s_load_dwordx2 s[28:29], s[0:1], 96")
    e("s_cmp_ge_u32 s2, 256")
    e("s_cbranch_scc1 L_end")
    e("v_lshrrev_b32 v1, 6, v0")
    e("v_and_b32 v0, 63, v0")
    e(f"v_readfirstlane_b32 {sW}, v1")
    e("v_lshlrev_b32 v1, 4, v0")
    for r in range(4): e(f"v_mov_b32 v{4+r}, -1")
    e(f"ds_write_b128 v1, v[4:7] offset:{QO}")
    e(f"s_and_b32 {sH}, s2, 31")
    e(f"s_lshr_b32 {sB}, s2, 5")
    e(f"s_mov_b32 {sSpin}, {SPINMAX}")
    e(f"s_cmp_ge_u32 {sW}, 4")
    e("s_cbranch_scc1 L_wrole")

    vL16, vKo, vPW, vPO, vOO = 1, 2, 3, 4, 5
    vM = 8; vA = [12, 16]; vD = [20, 24]; vQ = 28; vS = 44; vT = 48
    slot0 = 56
    NS = (NV - slot0) // 4
    t0, t1, t2, t3 = vT, vT + 1, vT + 2, vT + 3
    cK, cV = c0, c1
    e(f"v_lshrrev_b32 {v(t0)}, 4, v0")
    e(f"v_bfe_u32 {v(t2)}, v0, 2, 2")
    e(f"v_lshlrev_b32 {v(t1)}, 8, {v(t2)}")
    e(f"v_lshl_or_b32 {v(t1)}, {v(t0)}, 6, {v(t1)}")
    e(f"v_and_b32 {v(t2)}, 3, v0")
    e(f"v_lshl_or_b32 {v(vKo)}, {v(t2)}, 4, {v(t1)}")
    e(f"s_lshl_b32 {sT0}, s2, 20")
    e(f"s_add_u32 {sT0}, {sT0}, 0xC0000")
    e(f"s_lshl_b32 {cK}, {sW}, 12")
    e(f"s_mov_b32 {cV}, {cK}")
    for i in (iK, iV):
        e(f"s_mov_b32 s{srd(i)+2}, 0x40000"); e(f"s_mov_b32 s{srd(i)+3}, 0x20000")
    e("s_waitcnt lgkmcnt(0)")
    mk(iK, 6, sT0, None)
    NL = 128
    ids = {}; slot_of = {}
    free = [slot0 + 4 * i for i in range(NS)]
    def issue(i):
        kind, n = ("K", i) if i < 64 else ("V", i - 64)
        s = free.pop(0)
        cur, rs, off = (cK, sK, vKo) if kind == "K" else (cV, sV, vL16)
        if n % 4 == 0 and n > 0: e(f"s_addk_i32 {cur}, 0x4000")
        ids[i] = e.vmem(f"buffer_load_dwordx4 {v4(s)}, {v(off)}, {rs}, {cur} offen offset:{(n%4)*1024} {KV}")
        slot_of[i] = s
    work = []
    work.append((0, None, NPRE - 1, load_tag))
    def setup():
        mk(iV, 8, sT0, None)
        mk(iWs, 28, None, WSZ)
        mk(iOut, 24, None, 8192)
        e(f"v_and_b32 {v(t0)}, 1, v0")
        e(f"v_lshlrev_b32 {v(t0)}, 4, {v(t0)}")
        e(f"v_mov_b32 {v(t1)}, 0xffff")
        e(f"v_lshlrev_b32 {v(t0)}, {v(t0)}, {v(t1)}")
        e(f"v_bfe_u32 {v(t1)}, v0, 1, 2")
        for m in range(4):
            e(f"v_cmp_eq_u32 vcc, {m}, {v(t1)}")
            e(f"v_cndmask_b32 {v(vM+m)}, 0, {v(t0)}, vcc")
        e(f"s_lshl_b32 {sT1}, {sW}, 10")
        e(f"v_add_u32 {v(vPW)}, {sT1}, {v(vL16)}")
        e(f"v_lshrrev_b32 {v(vPO)}, 3, v0")
        e(f"v_lshlrev_b32 {v(vPO)}, 12, {v(vPO)}")
        e(f"v_and_b32 {v(t2)}, 7, v0")
        e(f"v_lshl_or_b32 {v(vPO)}, {v(t2)}, 4, {v(vPO)}")
        e(f"v_lshlrev_b32 {v(vOO)}, 2, {v(t2)}")
        e(f"v_lshrrev_b32 {v(t2)}, 5, v0")
        e(f"v_lshl_or_b32 {v(vOO)}, {v(t2)}, 1, {v(vOO)}")
        e(f"s_lshl_b32 {c2}, {sB}, 17")
        e(f"s_lshl_b32 {sT1}, {sH}, 7")
        e(f"s_add_u32 {c2}, {c2}, {sT1}")
        e(f"s_add_u32 {c2}, {c2}, {hex(BOX_A)}")
        e(f"s_lshr_b32 {c3}, {sH}, 2")
        e(f"s_lshl_b32 {c3}, {c3}, 17")
        e(f"s_lshl_b32 {sT1}, {sB}, 9")
        e(f"s_add_u32 {c3}, {c3}, {sT1}")
        e(f"s_and_b32 {sT1}, {sH}, 3")
        e(f"s_lshl_b32 {sT1}, {sT1}, 7")
        e(f"s_add_u32 {c3}, {c3}, {sT1}")
        e(f"s_add_u32 {c3}, {c3}, {hex(BOX_B)}")
        e(f"s_cmp_eq_u32 {sW}, 0")
        e(f"s_cselect_b32 {c2}, {c2}, {c3}")
        e(f"s_add_u32 {c3}, {c2}, 0x8000")
        e(f"s_add_u32 {sStr}, {c2}, 0x10000")
        e(f"s_add_u32 {sT3}, {c2}, 0x18000")
        e(f"s_lshl_b32 {sOB}, s2, 5")
        e("s_waitcnt lgkmcnt(0)")
        e("s_barrier")
        make_tag()
        stamp(0)
    work.append((200, None, D - 1, setup))
    def getq():
        stamp(0)
        e(f"v_lshlrev_b32 {v(t2)}, 2, v0")
        e(f"v_and_b32 {v(t3)}, 3, v0")
        e(f"v_mov_b32 {v(t1)}, 0")
        e.label("L_qpoll")
        e(f"ds_read_b32 {v(t0)}, {v(t2)} offset:{QO}")
        spin_guard()
        e("s_waitcnt lgkmcnt(0)")
        e(f"v_cmp_eq_u32 vcc, -1, {v(t0)}")
        e("s_cbranch_vccnz L_qpoll")
        for u in range(4):
            e(f"v_cmp_ne_u32 vcc, {u}, {v(t3)}")
            for m in range(4):
                e(f"v_cndmask_b32_dpp {v(vQ+4*u+m)}, {v(t0)}, {v(t1)}, vcc quad_perm:[{m},{m},{m},{m}] {DPP}")
        stamp(0)
    work.append((300, None, IB1, getq))
    def score_reduce(gi):
        Dr = vD[gi % 2]; z = gi % 4; r = vS + gi // 4
        first = True
        for t in range(4):
            if t == z: continue
            n = (4 * (z - t)) % 16
            e(f"v_add_f32_dpp {v(r)}, {v(Dr+t)}, {v(Dr+z) if first else v(r)} row_ror:{n} row_mask:0xf bank_mask:{hex(1 << z)}")
            first = False
    def kgroup(gi):
        def f():
            for u in range(4):
                e.wait_vm(ids[4*gi+u])
                mfma(vD[gi % 2], slot_of[4*gi+u], vQ + 4*u, u == 0)
            for u in range(4): free.append(slot_of[4*gi+u])
            if gi > 0: score_reduce(gi - 1)
        return f
    for gi in range(16): work.append((100, 4*gi+3, 0, kgroup(gi)))
    vm_, vl_ = vT + 4, vT + 5
    def sm1():
        score_reduce(15)
        e(f"s_mov_b32 {sT0}, 0x3db504f3")
        for k in (0, 2):
            a, b = vS + k, vS + k + 1
            e(f"v_cvt_pk_bf16_f32 {v(b)}, {v(a)}, {v(b)}")
            e(f"v_lshlrev_b32 {v(a)}, 16, {v(b)}")
            e(f"v_and_b32 {v(b)}, 0xffff0000, {v(b)}")
            e(f"v_mul_f32 {v(a)}, {sT0}, {v(a)}")
            e(f"v_mul_f32 {v(b)}, {sT0}, {v(b)}")
            e(f"v_cvt_pk_bf16_f32 {v(b)}, {v(a)}, {v(b)}")
            e(f"v_lshlrev_b32 {v(a)}, 16, {v(b)}")
            e(f"v_and_b32 {v(b)}, 0xffff0000, {v(b)}")
        e(f"v_max3_f32 {v(vm_)}, {v(vS)}, {v(vS+1)}, {v(vS+2)}")
        e(f"v_max_f32 {v(vm_)}, {v(vm_)}, {v(vS+3)}")
        wavered("v_max_f32", vm_, t3)
    work.append((300, None, 0, sm1))
    def sm2():
        for k in range(4): e(f"v_sub_f32 {v(vS+k)}, {v(vS+k)}, {v(vm_)}")
        for k in range(4): e(f"v_mul_f32 {v(vS+k)}, {LOG2E}, {v(vS+k)}")
        for k in range(4): e(f"v_exp_f32 {v(vS+k)}, {v(vS+k)}")
        e(f"s_lshl_b32 {sT0}, {sW}, 3")
        e(f"v_pk_add_f32 {v2(t0)}, {v2(vS)}, {v2(vS+2)}")
        e(f"v_add_f32 {v(vl_)}, {v(t0)}, {v(t1)}")
        wavered("v_add_f32", vl_, t3)
        e(f"v_min_u32 {v(vm_)}, -2, {v(vm_)}")
        e(f"v_min_u32 {v(vl_)}, -2, {v(vl_)}")
        e(f"v_mov_b32 {v(t3)}, {sT0}")
        e("s_mov_b64 exec, 1")
        e(f"ds_write_b64 {v(t3)}, {v2(vm_)} offset:{ML}")
        e("s_mov_b64 exec, -1")
    work.append((300, None, 0, sm2))
    work.append((300, None, 0, lambda: None))
    def buildA(n):
        for m in range(4):
            e(f"v_and_b32_dpp {v(vA[n%2]+m)}, {v(vS + n//16)}, {v(vM+m)} row_newbcast:{n%16} {DPP}")
    def sm3():
        stamp(0)
        e(f"v_mov_b32 {v(t3)}, 0")
        e.label("L_mlpoll")
        e(f"ds_read_b128 {v4(vQ)}, {v(t3)} offset:{ML}")
        e(f"ds_read_b128 {v4(vQ+4)}, {v(t3)} offset:{ML+16}")
        spin_guard()
        e("s_waitcnt lgkmcnt(0)")
        check8(vQ, t0, t1, "L_mlpoll")
        e(f"v_max3_f32 {v(t2)}, {v(vQ)}, {v(vQ+2)}, {v(vQ+4)}")
        e(f"v_max_f32 {v(t2)}, {v(t2)}, {v(vQ+6)}")
        for k in range(4): e(f"v_sub_f32 {v(vQ+2*k)}, {v(vQ+2*k)}, {v(t2)}")
        e(f"v_sub_f32 {v(vm_)}, {v(vm_)}, {v(t2)}")
        for k in range(4): e(f"v_mul_f32 {v(vQ+2*k)}, {LOG2E}, {v(vQ+2*k)}")
        e(f"v_mul_f32 {v(vm_)}, {LOG2E}, {v(vm_)}")
        for k in range(4): e(f"v_exp_f32 {v(vQ+2*k)}, {v(vQ+2*k)}")
        e(f"v_exp_f32 {v(vm_)}, {v(vm_)}")
        e(f"v_mul_f32 {v(vl_)}, {v(vQ)}, {v(vQ+1)}")
        for k in range(1, 4): e(f"v_fmac_f32 {v(vl_)}, {v(vQ+2*k)}, {v(vQ+2*k+1)}")
        e(f"v_rcp_f32 {v(vl_)}, {v(vl_)}")
        e(f"v_mul_f32 {v(vm_)}, {v(vm_)}, {v(vl_)}")
        for k in range(4): e(f"v_mul_f32 {v(vS+k)}, {v(vS+k)}, {v(vm_)}")
        for k in range(4): e(f"v_cvt_pk_bf16_f32 {v(vS+k)}, {v(vS+k)}, {v(vS+k)}")
        buildA(0)
        stamp(0)
    work.append((400, None, 0, sm3))
    def vstep(n):
        def f():
            if n + 1 < 64: buildA(n + 1)
            e.wait_vm(ids[64+n])
            mfma(vD[0], vA[n % 2], slot_of[64+n], n == 0)
            free.append(slot_of[64+n])
        return f
    for n in range(64): work.append((40, 64+n, 0, vstep(n)))
    wi = 0
    for i in range(NL):
        if i >= D: e.wait_vm(ids[i - D])
        assert free, f"out of slots at load {i}"
        issue(i)
        if i == NL - 1:
            e(f"ds_write_b32 {v(t3)}, {v(t3)} offset:{LI}")
        bud = BUD
        while wi < len(work) and bud > 0:
            cost, needl, mini, fn = work[wi]
            if i < mini: break
            if needl is not None and needl > i - D: break
            fn(); wi += 1; bud -= cost
    while wi < len(work):
        work[wi][3](); wi += 1
    e(f"ds_write_b128 {v(vPW)}, {v4(vD[0])} offset:{OP}")
    e("s_waitcnt lgkmcnt(0)")
    stamp(0)
    e("s_barrier")
    e(f"s_cmp_ge_u32 {sW}, 2")
    e("s_cbranch_scc1 L_end")
    stamp(0)
    e(f"s_lshl_b32 {sT0}, {sW}, 2")
    e(f"v_mov_b32 {v(t0)}, {sT0}")
    e(f"ds_read_b32 {v(vT+5)}, {v(t0)} offset:{GG}")
    e(f"v_lshlrev_b32 {v(t2)}, 2, v0")
    P = vQ
    poll4(P, vPO, [(c2, 0), (c3, 0), (sStr, 0), (sT3, 0)], "L_pollA")
    sum4(P)
    e(f"v_permlane32_swap_b32 {v(P)}, {v(P+1)}")
    e(f"v_add_f32 {v(P)}, {v(P)}, {v(P+1)}")
    e(f"v_mov_b32 {v(P+1)}, {v(P)}")
    e(f"v_permlane16_swap_b32 {v(P)}, {v(P+1)}")
    e(f"v_add_f32 {v(P)}, {v(P)}, {v(P+1)}")
    e(f"v_add_f32_dpp {v(P)}, {v(P)}, {v(P)} row_ror:8 {DPP}")
    e("s_waitcnt lgkmcnt(0)")
    rbf(P)
    e(f"v_mul_f32 {v(P)}, {v(P)}, {v(vT+5)}")
    rbf(P)
    e(f"s_cmp_eq_u32 {sW}, 0")
    e("s_cbranch_scc1 L_fbpoll")
    e(f"ds_write_b32 {v(t2)}, {v(P)} offset:{FB}")
    e("s_endpgm")
    e.label("L_fbpoll")
    e(f"ds_read_b32 {v(vT+4)}, {v(t2)} offset:{FB}")
    spin_guard()
    e("s_waitcnt lgkmcnt(0)")
    e(f"v_cmp_eq_u32 vcc, -1, {v(vT+4)}")
    e("s_cbranch_vccnz L_fbpoll")
    e(f"v_add_f32 {v(P)}, {v(P)}, {v(vT+4)}")
    e(f"v_cvt_pk_bf16_f32 {v(P)}, {v(P)}, {v(P)}")
    e(f"buffer_store_short {v(P)}, {v(vOO)}, {sOut}, {sOB} offen")
    e("s_cmp_lg_u32 s2, 0")
    e("s_cbranch_scc1 L_noepoch")
    e(f"v_mov_b32 {v(vT+6)}, s{TAG}")
    e(f"v_mov_b32 {v(vT+7)}, s{TAG+1}")
    e("s_mov_b64 exec, 1")
    e(f"buffer_store_dwordx2 {v2(vT+6)}, {v(t3)}, {sWs}, 0 offen offset:{EO} sc1")
    e("s_mov_b64 exec, -1")
    e.label("L_noepoch")
    if STAMPS and STW == 0: finish_stamps(vT, 0)
    e("s_endpgm")

    e.hist = []; e.vm = []
    e.label("L_wrole")
    vTo, vWoo, vTr, vSt = 8, 9, 10, 11
    vT = 12
    vD = 20
    vX = 36
    vG0, vG1, vTa = 52, 53, 54
    BL = [56 + 32 * i for i in range(5)]
    AT = 216
    SQ = 232
    FQ = 248
    t0, t1, t2, t3 = vT, vT + 1, vT + 2, vT + 3
    cT, cWo = c0, c1
    e(f"s_sub_u32 {sC}, {sW}, 4")
    e(f"v_lshrrev_b32 {v(t0)}, 4, v0")
    e(f"v_and_b32 {v(t1)}, 15, v0")
    e(f"v_lshlrev_b32 {v(t3)}, 4, {v(t1)}")
    e(f"v_and_b32 {v(t2)}, 1, {v(t0)}")
    e(f"v_lshl_or_b32 {v(vWoo)}, {v(t2)}, 16, {v(t3)}")
    e(f"v_lshrrev_b32 {v(t2)}, 1, {v(t0)}")
    e(f"v_lshl_or_b32 {v(vWoo)}, {v(t2)}, 12, {v(vWoo)}")
    e(f"s_lshl_b32 {cWo}, {sC}, 8")
    e(f"s_lshl_b32 {sOB}, s2, 12")
    e(f"s_cmp_ge_u32 {sC}, 2")
    e("s_cbranch_scc1 L_wlate")
    if PRIO: e(f"s_setprio {PRIO}")
    e(f"s_mul_i32 {sSG}, {sH}, 43")
    e(f"s_add_u32 {sCNT}, {sSG}, 43")
    e(f"s_lshr_b32 {sSG}, {sSG}, 3")
    e(f"s_lshr_b32 {sCNT}, {sCNT}, 3")
    e(f"s_sub_u32 {sCNT}, {sCNT}, {sSG}")
    e(f"s_lshl_b32 {sCNT}, {sCNT}, 3")
    e(f"s_and_b32 {sT2}, {sB}, 1")
    e(f"s_lshl_b32 {sT0}, {sT2}, 7")
    e(f"s_lshl_b32 {sT1}, {sH}, 8")
    e(f"s_add_u32 {sT0}, {sT0}, {sT1}")
    e(f"s_lshl_b32 {sT1}, {sSG}, 4")
    e(f"s_cmp_eq_u32 {sC}, 0")
    e(f"s_cselect_b32 {sT0}, {sT0}, {sT1}")
    e(f"s_movk_i32 {sStr}, 2752")
    e(f"s_cselect_b32 {sStr}, 0x2000, {sStr}")
    e(f"s_mov_b32 {sT1}, {512*2752}")
    e(f"s_cselect_b32 {sT1}, 0x400000, {sT1}")
    e(f"s_cselect_b32 {sT3}, 8, 6")
    e(f"s_sub_u32 s{srd(iTl)+2}, {sT1}, {sT0}")
    e(f"s_mov_b32 s{srd(iTl)+3}, 0x20000")
    e(f"v_lshrrev_b32 {v(t2)}, 3, v0")
    e(f"v_and_b32 {v(t3)}, 7, v0")
    e(f"v_mul_u32_u24 {v(vTo)}, {sStr}, {v(t2)}")
    e(f"v_lshl_add_u32 {v(vTo)}, {v(t3)}, 4, {v(vTo)}")
    e(f"v_cmp_gt_u32 vcc, {sT3}, {v(t3)}")
    e(f"v_mov_b32 {v(vT+4)}, 0x40000000")
    e(f"v_cndmask_b32 {v(vTo)}, {v(vT+4)}, {v(vTo)}, vcc")
    e(f"s_lshr_b32 {sT3}, {sB}, 1")
    e(f"s_mul_i32 {cT}, {sT3}, {sStr}")
    e(f"s_lshl_b32 {cT}, {cT}, 7")
    e(f"s_lshl_b32 {sStr}, {sStr}, 3")
    e(f"s_lshl_b32 {sT3}, {sT3}, 8")
    e(f"v_lshlrev_b32 {v(vT+4)}, 10, {v(t3)}")
    e(f"v_lshl_or_b32 {v(vT+4)}, {v(t0)}, 4, {v(vT+4)}")
    e(f"s_lshl_b32 {sT1}, {sC}, 14")
    e(f"s_add_u32 m0, {sT1}, {TB}")
    e("s_waitcnt lgkmcnt(0)")
    load_tag()
    e(f"s_cmp_eq_u32 {sT2}, 0")
    e(f"s_cselect_b64 s[16:17], s[16:17], s[18:19]")
    e(f"s_cmp_eq_u32 {sC}, 0")
    e(f"s_cselect_b64 s[16:17], s[10:11], s[16:17]")
    mk(iTl, 16, sT0, None)
    if "tile" in SKIP: e(f"s_mov_b32 s{srd(iTl)+2}, 0")
    def tile_load(k):
        if k > 0:
            e("s_addk_i32 m0, 1024")
            e(f"s_add_u32 {cT}, {cT}, {sStr}")
        e.vmem(f"buffer_load_dwordx4 {v(vTo)}, {sTl}, {cT} offen {TP} lds")
    for k in range(4): tile_load(k)
    mk(iWs, 28, None, WSZ)
    e(f"s_getreg_b32 {sT0}, hwreg(HW_REG_XCC_ID, 0, 4)")
    e(f"s_lshl_b32 {c3}, {sH}, 7")
    e(f"s_add_u32 {c3}, {c3}, {hex(HF)}")
    e(f"s_lshl_b32 {sT1}, {sB}, 3")
    e(f"s_add_u32 {sT1}, {sT1}, {c3}")
    e(f"v_mov_b32 {v(vT+5)}, 0")
    e("s_waitcnt lgkmcnt(0)")
    e("s_barrier")
    make_tag()
    e(f"s_xor_b32 s{OWN}, s{TAG}, {sT0}")
    e(f"s_mov_b32 s{OWN+1}, s{TAG+1}")
    e(f"s_cmp_lg_u32 {sC}, 0")
    e("s_cbranch_scc1 L_nohello")
    e(f"v_mov_b32 {v(vT+6)}, s{OWN}")
    e(f"v_mov_b32 {v(vT+7)}, s{OWN+1}")
    e("s_mov_b64 exec, 1")
    e(f"buffer_store_dwordx2 {v2(vT+6)}, {v(vT+5)}, {sWs}, {sT1} offen sc1")
    e("s_mov_b64 exec, -1")
    e.label("L_nohello")
    mk(iX, 4, None, 8192)
    for ks in range(4):
        e.vmem(f"buffer_load_dwordx4 {v4(vX+4*ks)}, {v(vT+4)}, {sX}, {sT3} offen offset:{64*ks}")
    for k in range(4, 16): tile_load(k)
    e(f"s_lshl_b32 {sT1}, {sH}, 17")
    mk(iWo, 12, sT1, 0x20000)
    e(f"s_lshl_b32 {sT0}, {sSG}, 13")
    e(f"s_lshl_b32 {sT1}, {sB}, 7")
    e(f"s_add_u32 {sT0}, {sT0}, {sT1}")
    mk(iW2, 20, sT0, (str(48*1024), sT1))
    e(f"v_bfe_u32 {v(t2)}, v0, 2, 2")
    e(f"v_lshlrev_b32 {v(vTr)}, 7, {v(t2)}")
    e(f"v_lshl_or_b32 {v(vTr)}, {v(t0)}, 10, {v(vTr)}")
    e(f"v_and_b32 {v(t2)}, 3, v0")
    e(f"v_lshl_or_b32 {v(vTr)}, {v(t2)}, 3, {v(vTr)}")
    e(f"s_lshl_b32 {sT1}, {sC}, 14")
    e(f"v_add_u32 {v(vT+7)}, {sT1}, {v(vTr)}")
    e(f"v_lshlrev_b32 {v(vSt)}, 9, {v(t3)}")
    e(f"v_lshl_or_b32 {v(vSt)}, {v(t0)}, 5, {v(vSt)}")
    e(f"v_and_b32 {v(t2)}, 8, v0")
    e(f"v_lshl_or_b32 {v(vSt)}, {v(t2)}, 1, {v(vSt)}")
    for q in range(4):
        e(f"v_mov_b32 {v(SQ+4*q+2)}, s{TAG}")
        e(f"v_mov_b32 {v(SQ+4*q+3)}, s{TAG+1}")
    stamp(1)
    e.label("L_hello")
    e(f"s_buffer_load_dwordx16 s[32:47], {sWs}, {c3} glc")
    spin_guard()
    e("s_waitcnt lgkmcnt(0)")
    for k in range(8): e(f"s_xor_b64 s[{32+2*k}:{33+2*k}], s[{32+2*k}:{33+2*k}], {sOwn}")
    for st in (8, 4, 2):
        for k in range(0, st, 2): e(f"s_or_b64 s[{32+k}:{33+k}], s[{32+k}:{33+k}], s[{32+k+st}:{33+k+st}]")
    e(f"s_lshr_b64 {M0}, s[32:33], 4")
    e("s_cbranch_scc1 L_hello")
    e(f"s_mov_b32 {sSlow}, s32" if not FORCE_SLOW else f"s_mov_b32 {sSlow}, 1")
    stamp(1)
    e.wait_vm_all()
    stamp(1)
    def tile_gemm(addr, base, nks):
        R = BL[0]
        def reads(ks):
            for cb in range(4):
                for hh in range(2):
                    r = R + ks * 16 + cb * 4 + hh * 2
                    e(f"ds_read_b64_tr_b16 {v2(r)}, {v(addr)} offset:{base + ks*4096 + hh*512 + cb*32}")
        reads(0)
        for ks in range(nks):
            if ks + 1 < nks:
                reads(ks + 1); e("s_waitcnt lgkmcnt(8)" if not STAMPS else "s_waitcnt lgkmcnt(0)")
            else: e("s_waitcnt lgkmcnt(0)")
            for cb in range(4):
                mfma(vD + 4*cb, R + ks * 16 + cb * 4, vX + 4*ks, ks == 0)
        e(f"v_cmp_gt_u32 vcc, 8, {v(t1)}")
        for cb in range(4):
            e(f"v_cndmask_b32 {v(SQ+4*cb)}, {v(vD+4*cb+2)}, {v(vD+4*cb)}, vcc")
            e(f"v_cndmask_b32 {v(SQ+4*cb+1)}, {v(vD+4*cb+3)}, {v(vD+4*cb+1)}, vcc")
    def stores(lines, lbl):
        e(f"s_cmp_lg_u32 {sSlow}, 0")
        e(f"s_cbranch_scc1 {lbl}_wt")
        for t in lines: e(t)
        e(f"s_branch {lbl}_done")
        e.label(f"{lbl}_wt")
        for t in lines: e(t + " sc1")
        e.label(f"{lbl}_done")
    tile_gemm(vT + 7, TB, 4)
    e(f"s_lshl_b32 {sT0}, s2, 13")
    e(f"s_lshl_b32 {sT1}, {sC}, 12")
    e(f"s_add_u32 {sT0}, {sT0}, {sT1}")
    e(f"s_add_u32 {sT0}, {sT0}, {hex(BOX_P)}")
    stores([f"buffer_store_dwordx4 {v4(SQ+4*cb)}, {v(vSt)}, {sWs}, {sT0} offen offset:{128*cb}" for cb in range(4)], "L_pubp")
    e(f"v_lshrrev_b32 {v(vT+4)}, 5, v0")
    e(f"v_lshlrev_b32 {v(vT+4)}, 18, {v(vT+4)}")
    e(f"v_and_b32 {v(vT+5)}, 31, v0")
    e(f"v_lshl_or_b32 {v(vT+4)}, {v(vT+5)}, 4, {v(vT+4)}")
    e(f"s_lshl_b32 {sT0}, {sH}, 13")
    e(f"s_add_u32 {sT0}, {sT0}, {sT1}")
    e(f"s_lshl_b32 {sT1}, {sB}, 9")
    e(f"s_add_u32 {sT0}, {sT0}, {sT1}")
    e(f"s_add_u32 {sT0}, {sT0}, {hex(BOX_P)}")
    e(f"s_add_u32 {sT1}, {sT0}, 0x80000")
    e(f"s_add_u32 {sT2}, {sT0}, 0x100000")
    e(f"s_add_u32 {sT3}, {sT0}, 0x180000")
    poll4(vD, vT + 4, [(sT0, 0), (sT1, 0), (sT2, 0), (sT3, 0)], "L_ppoll")
    sum4(vD)
    e(f"v_cvt_pk_bf16_f32 {v(vD)}, {v(vD)}, {v(vD+1)}")
    if PRIO: e("s_setprio 0")
    e(f"s_cmp_lg_u32 {sC}, 0")
    e("s_cbranch_scc1 L_ffn")
    e(f"v_min_u32 {v(vD)}, -2, {v(vD)}")
    e(f"v_lshlrev_b32 {v(t2)}, 2, v0")
    e(f"ds_write_b32 {v(t2)}, {v(vD)} offset:{QO}")
    stamp(1)
    e("s_branch L_wo")
    e.drain_hazards()
    e.label("L_ffn")
    e(f"s_mov_b32 m0, {T2}")
    e(f"v_lshrrev_b32 {v(t2)}, 3, v0")
    e(f"v_lshlrev_b32 {v(t2)}, 10, {v(t2)}")
    e(f"v_lshl_or_b32 {v(vTo)}, {v(t3)}, 4, {v(t2)}")
    e(f"s_mov_b32 {cT}, 0")
    for k in range(8):
        if k > 0:
            e("s_addk_i32 m0, 1024")
            e(f"s_addk_i32 {cT}, 0x2000")
        e.vmem(f"buffer_load_dwordx4 {v(vTo)}, {sW2}, {cT} offen {TP} lds")
    e(f"v_mov_b32 {v(vD+1)}, {v(vD)}")
    e(f"v_permlane32_swap_b32 {v(vD)}, {v(vD+1)}")
    e(f"v_lshlrev_b32 {v(vD+2)}, 16, {v(vD)}")
    e(f"v_and_b32 {v(vD+3)}, 0xffff0000, {v(vD)}")
    e(f"v_lshlrev_b32 {v(vD+4)}, 16, {v(vD+1)}")
    e(f"v_and_b32 {v(vD+5)}, 0xffff0000, {v(vD+1)}")
    for k in range(2):
        sigm(vD+6+k, vD+2+k)
        e(f"v_mul_f32 {v(vD+6+k)}, {v(vD+6+k)}, {v(vD+2+k)}")
        rbf(vD+6+k)
        e(f"v_mul_f32 {v(vD+6+k)}, {v(vD+6+k)}, {v(vD+4+k)}")
    e(f"v_cvt_pk_bf16_f32 {v(vD)}, {v(vD+6)}, {v(vD+7)}")
    e(f"v_lshlrev_b32 {v(t2)}, 1, v0")
    e(f"v_cmp_gt_u32 vcc, {sCNT}, {v(t2)}")
    e(f"v_cndmask_b32 {v(SQ)}, 0, {v(vD)}, vcc")
    e(f"v_mov_b32_dpp {v(SQ+1)}, {v(SQ)} quad_perm:[1,1,3,3] {DPP}")
    e(f"v_lshlrev_b32 {v(t2)}, 3, v0")
    e(f"s_lshl_b32 {sT0}, s2, 8")
    e(f"s_add_u32 {sT0}, {sT0}, {hex(BOX_H)}")
    e("s_mov_b32 exec_lo, 0x55555555")
    e("s_mov_b32 exec_hi, 0")
    stores([f"buffer_store_dwordx4 {v4(SQ)}, {v(t2)}, {sWs}, {sT0} offen"], "L_pubh")
    e("s_mov_b64 exec, -1")
    e(f"v_lshlrev_b32 {v(t2)}, 13, {v(t3)}")
    e(f"v_lshl_or_b32 {v(t2)}, {v(t0)}, 5, {v(t2)}")
    e(f"s_lshl_b32 {sT0}, {sH}, 8")
    e(f"s_add_u32 {sT0}, {sT0}, {hex(BOX_H)}")
    poll4(vD, t2, [(sT0, 0), (sT0, 16), (sT0, 128), (sT0, 144)], "L_hpoll")
    for ks in range(2):
        e(f"v_mov_b32 {v(vX+4*ks)}, {v(vD+8*ks)}")
        e(f"v_mov_b32 {v(vX+4*ks+1)}, {v(vD+8*ks+1)}")
        e(f"v_mov_b32 {v(vX+4*ks+2)}, {v(vD+8*ks+4)}")
        e(f"v_mov_b32 {v(vX+4*ks+3)}, {v(vD+8*ks+5)}")
    tile_gemm(vTr, T2, 2)
    if STAMPS and STW >= 4:
        stamp_n[0] -= 1; stamp(1)
    e("s_branch L_wo")
    e.hist = []; e.vm = []
    e.label("L_wlate")
    e("s_waitcnt lgkmcnt(0)")
    load_tag()
    e(f"s_lshl_b32 {sT1}, {sH}, 17")
    mk(iWo, 12, sT1, 0x20000)
    mk(iWs, 28, None, WSZ)
    e(f"s_lshl_b32 {sT1}, {sB}, 10")
    mk(iX, 4, sT1, 1024)
    mk(iG, 22, None, 1024)
    mk(iOut, 24, None, 8192)
    e("s_waitcnt lgkmcnt(0)")
    e("s_barrier")
    make_tag()
    e(f"buffer_load_dwordx4 {v4(vX)}, v1, {sX}, 0 offen")
    e(f"buffer_load_dwordx4 {v4(vX+4)}, v1, {sG}, 0 offen")
    e(f"v_mov_b32 {v(t2)}, 0")
    e(f"v_mov_b32 {v(vSt)}, 0")
    e(f"s_add_u32 {sT0}, {sOB}, {hex(BOX_A)}")
    e(f"s_add_u32 {sT1}, {sOB}, {hex(BOX_B)}")
    e(f"buffer_load_dword {v(vX+8)}, {v(t2)}, {sWs}, {sT0} offen sc1")
    e(f"buffer_load_dword {v(vX+9)}, {v(t2)}, {sWs}, {sT1} offen sc1")
    e(f"buffer_load_dword {v(vX+10)}, {v(t2)}, {sOut}, 0 offen sc1")
    if STAMPS and STW >= 4:
        for k in range(4): e(f"s_memrealtime s[{4+2*k}:{5+2*k}]")
    e.drain_hazards()
    e.label("L_wo")
    e.hist = []; e.vm = []
    if "wo" in SKIP: e(f"s_mov_b32 s{srd(iWo)+2}, 0")
    wids = {}
    def wo_issue(k):
        t, r = divmod(k, 8)
        s = BL[t + 1] + 4 * r
        if k % 4 == 0 and k > 0: e(f"s_addk_i32 {cWo}, 0x2000")
        wids[k] = e.vmem(f"buffer_load_dwordx4 {v4(s)}, {v(vWoo)}, {sWo}, {cWo} offen offset:{(k%4)*1024} {WP}")
    e(f"s_mov_b32 {sT0}, 0x05040100")
    e(f"s_mov_b32 {sT1}, 0x07060302")
    for k in range(DW): wo_issue(k)
    for k in range(32):
        e.wait_vm(wids[k])
        if k + DW < 32: wo_issue(k + DW)
        if k % 2 == 1:
            t, m = k // 8, (k % 8) // 2
            for c in range(4):
                a = BL[t+1] + 8*m + c; b = a + 4
                e(f"v_perm_b32 {v(BL[t] + 4*(2*c) + m)}, {v(b)}, {v(a)}, {sT0}")
                e(f"v_perm_b32 {v(BL[t] + 4*(2*c+1) + m)}, {v(b)}, {v(a)}, {sT1}")
    stamp(1)
    e(f"s_cmp_lg_u32 {sC}, 2")
    e("s_cbranch_scc1 L_nogate")
    for k in range(4):
        e(f"v_lshlrev_b32 {v(vD+2*k)}, 16, {v(vX+k)}")
        e(f"v_and_b32 {v(vD+2*k+1)}, 0xffff0000, {v(vX+k)}")
        e(f"v_lshlrev_b32 {v(vD+8+2*k)}, 16, {v(vX+4+k)}")
        e(f"v_and_b32 {v(vD+8+2*k+1)}, 0xffff0000, {v(vX+4+k)}")
    for k in range(8): e(f"v_mul_f32 {v(vD+k)}, {v(vD+k)}, {v(vD+8+k)}")
    for k in range(8): rbf(vD + k)
    for st in (4, 2):
        for k in range(0, st, 2):
            e(f"v_pk_add_f32 {v2(vD+k)}, {v2(vD+k)}, {v2(vD+k+st)}")
    e(f"v_add_f32 {v(vD)}, {v(vD)}, {v(vD+1)}")
    wavered("v_add_f32", vD, t3)
    rbf(vD)
    sigm(vG0, vD)
    rbf(vG0)
    e(f"v_sub_f32 {v(vG1)}, 1.0, {v(vG0)}")
    rbf(vG1)
    e(f"v_mov_b32 {v(t2)}, 0")
    e("s_mov_b64 exec, 1")
    e(f"ds_write_b64 {v(t2)}, {v2(vG0)} offset:{GG}")
    e("s_mov_b64 exec, -1")
    e.drain_hazards()
    e.label("L_nogate")
    e(f"s_cmp_lg_u32 {sC}, 1")
    e("s_cbranch_scc1 L_nob")
    e(f"v_mov_b32 {v(t2)}, 0")
    e(f"s_add_u32 {sT0}, {sOB}, {hex(BOX_B)}")
    e.label("L_lipoll")
    e(f"ds_read_b32 {v(t3)}, {v(t2)} offset:{LI}")
    spin_guard()
    e("s_waitcnt lgkmcnt(0)")
    e(f"v_cmp_eq_u32 vcc, -1, {v(t3)}")
    e("s_cbranch_vccnz L_lipoll")
    for cb in range(4):
        e(f"buffer_store_dwordx4 {v4(SQ+4*cb)}, {v(vSt)}, {sWs}, {sT0} offen offset:{128*cb} sc1")
    e.label("L_nob")
    e(f"v_lshlrev_b32 {v(t2)}, 3, v0")
    e(f"v_lshlrev_b32 {v(t3)}, 6, {v(t1)}")
    e(f"v_lshl_or_b32 {v(t3)}, {v(t0)}, 4, {v(t3)}")
    e(f"s_lshl_b32 {sT1}, {sC}, 10")
    e(f"s_add_u32 {sOB}, {sOB}, {sT1}")
    e(f"s_add_u32 {sOB}, {sOB}, {hex(BOX_A)}")
    e(f"v_mov_b32 {v(FQ+2)}, s{TAG}")
    e(f"v_mov_b32 {v(FQ+3)}, s{TAG+1}")
    e("s_waitcnt lgkmcnt(0)")
    stamp(1)
    e("s_barrier")
    stamp(1)
    ACC = BL[4]
    e(f"ds_read2st64_b64 {v4(vD)}, {v(t2)} offset0:{OP//512} offset1:{(OP+1024)//512}")
    e(f"ds_read2st64_b64 {v4(vD+4)}, {v(t2)} offset0:{(OP+2048)//512} offset1:{(OP+3072)//512}")
    e("s_waitcnt lgkmcnt(0)")
    e(f"v_pk_add_f32 {v2(vD)}, {v2(vD)}, {v2(vD+2)}")
    e(f"v_pk_add_f32 {v2(vD+4)}, {v2(vD+4)}, {v2(vD+6)}")
    e(f"v_pk_add_f32 {v2(vD)}, {v2(vD)}, {v2(vD+4)}")
    e(f"v_cvt_pk_bf16_f32 {v(vTa)}, {v(vD)}, {v(vD+1)}")
    def bA(t, m): e(f"v_mov_b32_dpp {v(AT+4*t+m)}, {v(vTa)} row_newbcast:{4*t+m} {DPP}")
    for m in range(4): bA(0, m)
    for t in range(4):
        for ee in range(8):
            if t < 3 and ee < 4: bA(t + 1, ee)
            mfma(ACC + 4*ee, AT + 4*t, BL[t] + 4*ee, t == 0)
    for ee in range(8):
        e(f"v_mov_b32_dpp {v(FQ + ee % 2)}, {v(ACC+4*ee)} quad_perm:[0,1,2,3] row_mask:{hex(1 << (ee // 2))} bank_mask:0xf")
    e.vmem(f"buffer_store_dwordx4 {v4(FQ)}, {v(t3)}, {sWs}, {sOB} offen sc1")
    if STAMPS and STW >= 4:
        e(f"s_cmp_lg_u32 {sW}, {STW}")
        e("s_cbranch_scc1 L_end")
        stamp(1)
        finish_stamps(vT, 1)
    e.label("L_end")
    e("s_endpgm")
    e.raw('.section .rodata,"a"'); e.raw(".p2align 6")
    e.raw(f".amdhsa_kernel {NAME}_kernel")
    e.raw(f"  .amdhsa_next_free_vgpr {NV}")
    e.raw("  .amdhsa_next_free_sgpr 102")
    e.raw(f"  .amdhsa_accum_offset {(NV + 3) // 4 * 4}")
    e.raw("  .amdhsa_group_segment_fixed_size 0"); e.raw("  .amdhsa_kernarg_size 104")
    e.raw("  .amdhsa_user_sgpr_count 2"); e.raw("  .amdhsa_user_sgpr_kernarg_segment_ptr 1")
    e.raw("  .amdhsa_system_sgpr_workgroup_id_x 1"); e.raw("  .amdhsa_float_denorm_mode_32 3")
    e.raw(".end_amdhsa_kernel")
    print(f"NV={NV} nops={e.nops} lines={len(e.lines)}", file=sys.stderr)
    return e.text()

if __name__ == "__main__":
    ap = argparse.ArgumentParser()
    ap.add_argument("out"); ap.add_argument("--kw", default="{}")
    a = ap.parse_args()
    open(a.out, "w").write(gen(**eval(a.kw)))
```

```python
import sys, argparse
from emit import Emitter
NAME = "gated_mix__sliding_block_cached__glu_gated_swiglu__decode"
HEADER = open("cdna_kernels/" + NAME + ".s.ref").read().split("; Override launch")[0]

DPP = "row_mask:0xf bank_mask:0xf"
LOG2E = "0x3fb8aa3b"

def gen(NSLOT=25, KV="nt", WP="nt", STAMPS=False, KQ=(3,2,3,2,3,2,2), K0=0, TAILV=16, SPIN=0, HMAP=0, SKIP=()):
    if SPIN: STAMPS = True
    E = Emitter()
    e = E
    QP, UP, OP, QB, GP, ML = 0, 8192, 16384, 24576, 26624, 26688
    LDS = 27648
    sW = "s3"
    sH, sB = "s30", "s31"
    sK, sV, sWq, sWo, sW1, sW3, sW2, sX, sG, sWs, sOut, sDbg = [f"s[{32+4*i}:{35+4*i}]" for i in range(12)]
    def srd(i): return 32 + 4 * i
    cK, cV, cWq, cW13, cWo, cW2 = "s84", "s85", "s86", "s87", "s88", "s89"
    sSG, sCNT, sT0, sT1, sT2, sXO, sOB = "s90", "s91", "s92", "s93", "s94", "s95", "s96"
    nxt = [1]
    def vnew(n=1, align=1):
        while nxt[0] % align: nxt[0] += 1
        r = nxt[0]; nxt[0] += n
        return r
    vL = 0
    vL16 = vnew(); vKo = vnew(); vWqo = vnew(); vW13o = vnew(); vWoo = vnew(); vW2o = vnew()
    vDup = vnew()
    vM = vnew(4, 4)
    vA = [vnew(4, 4), vnew(4, 4)]
    vD0 = vnew(4, 4); vD1 = vnew(4, 4); vD2 = vnew(4, 4)
    vQ = vnew(16, 4)
    vS = vnew(8, 4)
    vT = vnew(8, 4)
    vG = vnew(); vG1 = vnew(); vHd = vnew(); vRdy = vnew()
    slot0 = vnew(0, 4)
    slots = [slot0 + 4 * i for i in range(NSLOT)]
    NV = slot0 + 4 * NSLOT
    def v(r): return f"v{r}"
    def v4(r): return f"v[{r}:{r+3}]"
    def v2(r): return f"v[{r}:{r+1}]"

    stamp_n = [0]
    def stamp():
        if not STAMPS: return
        k = stamp_n[0]; stamp_n[0] += 1
        e(f"s_memrealtime s[{4+2*k}:{5+2*k}]")

    e.raw(HEADER.rstrip())
    e.raw(f"; @launch grid=(256,1,1) block=(512,1,1) lds={LDS}")
    e.raw('.amdgcn_target "amdgcn-amd-amdhsa--gfx950"')
    e.raw(".text")
    e.raw(f".globl {NAME}_kernel")
    e.raw(".p2align 8")
    e.raw(f".type {NAME}_kernel,@function")
    e.raw(f"{NAME}_kernel:")
    if STAMPS: e("s_memrealtime s[98:99]")
    e("s_load_dwordx16 s[4:19], s[0:1], 0")
    e("s_load_dwordx8 s[20:27], s[0:1], 64")
    e("s_load_dwordx2 s[28:29], s[0:1], 96")
    e("s_cmp_ge_u32 s2, 256")
    e("s_cbranch_scc1 L_end")
    t0, t1, t2, t3 = vT, vT + 1, vT + 2, vT + 3
    e(f"v_lshrrev_b32 {v(t0)}, 6, v0")
    e(f"v_and_b32 v0, 63, v0")
    e(f"v_readfirstlane_b32 {sW}, {v(t0)}")
    e(f"v_lshlrev_b32 {v(vL16)}, 4, v0")
    e(f"v_lshrrev_b32 {v(t0)}, 4, v0")
    e(f"v_and_b32 {v(t1)}, 15, v0")
    e(f"v_bfe_u32 {v(t2)}, v0, 2, 2")
    e(f"v_lshlrev_b32 {v(vKo)}, 8, {v(t2)}")
    e(f"v_lshl_or_b32 {v(vKo)}, {v(t0)}, 6, {v(vKo)}")
    e(f"v_and_b32 {v(t2)}, 3, v0")
    e(f"v_lshl_or_b32 {v(vKo)}, {v(t2)}, 4, {v(vKo)}")
    e(f"v_lshlrev_b32 {v(t3)}, 4, {v(t1)}")
    e(f"v_lshl_or_b32 {v(vWqo)}, {v(t0)}, 17, {v(t3)}")
    e(f"v_lshl_or_b32 {v(vWoo)}, {v(t0)}, 15, {v(t3)}")
    e(f"v_mul_u32_u24 {v(vW2o)}, 6144, {v(t0)}")
    e(f"v_add_u32 {v(vW2o)}, {v(vW2o)}, {v(t3)}")
    e(f"v_mul_u32_u24 {v(vW13o)}, 44032, {v(t0)}")
    e(f"v_and_b32 {v(t3)}, 0x70, {v(t3)}")
    e(f"v_add_u32 {v(vW13o)}, {v(vW13o)}, {v(t3)}")
    if HMAP == 1:
        e(f"s_and_b32 {sH}, s2, 7")
        e(f"s_lshl_b32 {sH}, {sH}, 2")
        e(f"s_bfe_u32 {sB}, s2, 0x20003")
        e(f"s_or_b32 {sH}, {sH}, {sB}")
        e(f"s_and_b32 s2, s2, 0xe0")
        e(f"s_or_b32 s2, s2, {sH}")
    else:
        e(f"s_and_b32 {sH}, s2, 31")
    e(f"s_lshr_b32 {sB}, s2, 5")
    e(f"s_lshl_b32 {sT0}, s2, 20")
    e(f"s_add_u32 {sT0}, {sT0}, 0xC0000")
    e(f"s_lshl_b32 {cK}, {sW}, 12")
    e(f"s_mov_b32 {cV}, {cK}")
    e(f"s_lshl_b32 {cWq}, {sW}, 19")
    e(f"s_mul_i32 {cW13}, {sW}, {64*2752}")
    e(f"s_mul_i32 {sSG}, {sH}, 43")
    e(f"s_add_u32 {sCNT}, {sSG}, 43")
    e(f"s_lshr_b32 {sSG}, {sSG}, 3")
    e(f"s_lshr_b32 {sCNT}, {sCNT}, 3")
    e(f"s_sub_u32 {sCNT}, {sCNT}, {sSG}")
    e(f"s_lshl_b32 {sCNT}, {sCNT}, 3")
    e(f"s_mov_b32 s80, 0x003f003f")
    e(f"s_mov_b32 s81, 0x003f003f")
    e(f"s_mov_b32 s82, 0x3f003f00")
    e(f"s_mov_b32 s83, 0x3f003f00")
    e(f"s_lshl_b32 {sXO}, {sW}, 7")
    e(f"s_lshl_b32 {sOB}, s2, 12")
    e(f"s_lshl_b32 {sT1}, {sW}, 9")
    e(f"s_add_u32 {sOB}, {sOB}, {sT1}")
    e(f"s_lshr_b32 {sT1}, {sW}, 2")
    e(f"s_and_b32 {sT2}, {sW}, 3")
    e(f"s_lshl_b32 {sT2}, {sT2}, 8")
    e(f"s_lshl_b32 {cWo}, {sT1}, 12")
    e(f"s_add_u32 {cWo}, {cWo}, {sT2}")
    e(f"s_mul_i32 {cW2}, {sT1}, {24*1024}")
    e(f"s_add_u32 {cW2}, {cW2}, {sT2}")
    for i in range(12):
        e(f"s_mov_b32 s{srd(i)+3}, 0x20000")
    e(f"s_mov_b32 s{srd(0)+2}, 0x40000")
    e(f"s_mov_b32 s{srd(1)+2}, 0x40000")
    e(f"v_lshlrev_b32 {v(t2)}, 1, v0")
    e(f"v_lshlrev_b32 {v(t3)}, 3, v0")
    e(f"v_mov_b32 {v(vT+4)}, -1")
    e(f"v_mov_b32 {v(vT+5)}, -1")
    e("s_waitcnt lgkmcnt(0)")
    def mk(i, ptr, off, size):
        b = srd(i)
        if off is None:
            e(f"s_mov_b32 s{b}, s{ptr}")
            e(f"s_mov_b32 s{b+1}, s{ptr+1}")
        else:
            e(f"s_add_u32 s{b}, s{ptr}, {off}")
            e(f"s_addc_u32 s{b+1}, s{ptr+1}, 0")
        if size is not None:
            if isinstance(size, int): e(f"s_mov_b32 s{b+2}, {size}")
            else: e(f"s_sub_u32 s{b+2}, {size[0]}, {size[1]}")
    mk(0, 6, sT0, None)

    free = list(slots)
    got = {}
    queue = []
    def do_issue(item):
        kind, n = item
        if kind == "K" or kind == "V":
            s = free.pop(0)
            cur, rs, off = (cK, sK, vKo) if kind == "K" else (cV, sV, vL16)
            if n % 4 == 0 and n > 0: e(f"s_add_u32 {cur}, {cur}, 0x8000")
            i = e.vmem(f"buffer_load_dwordx4 {v4(s)}, {v(off)}, {rs}, {cur} offen offset:{(n%4)*1024} {KV}")
            got[item] = (s, i)
        elif kind == "Wq":
            s = free.pop(0)
            if n > 0: e(f"s_addk_i32 {cWq}, 0x2000")
            i = e.vmem(f"buffer_load_dwordx4 {v4(s)}, {v(vWqo)}, {sWq}, {cWq} offen {WP}")
            got[item] = (s, i)
        elif kind == "W13":
            s0 = free.pop(0); s1 = free.pop(0)
            if n > 0: e(f"s_addk_i32 {cW13}, {2*2752}")
            e("s_mov_b64 exec, s[80:81]")
            e.vmem(f"buffer_load_dwordx4 {v4(s0)}, {v(vW13o)}, {sW1}, {cW13} offen {WP}")
            e.vmem(f"buffer_load_dwordx4 {v4(s1)}, {v(vW13o)}, {sW1}, {cW13} offen offset:2752 {WP}")
            e("s_mov_b64 exec, s[82:83]")
            i0 = e.vmem(f"buffer_load_dwordx4 {v4(s0)}, {v(vW13o)}, {sW3}, {cW13} offen {WP}")
            i1 = e.vmem(f"buffer_load_dwordx4 {v4(s1)}, {v(vW13o)}, {sW3}, {cW13} offen offset:2752 {WP}")
            e("s_mov_b64 exec, -1")
            got[("W13r", 2*n)] = (s0, i0); got[("W13r", 2*n+1)] = (s1, i1)
        elif kind == "Wo":
            s = free.pop(0)
            if n % 4 == 0 and n > 0: e(f"s_addk_i32 {cWo}, 0x2000")
            i = e.vmem(f"buffer_load_dwordx4 {v4(s)}, {v(vWoo)}, {sWo}, {cWo} offen offset:{(n%4)*1024} {WP}")
            got[item] = (s, i)
        elif kind == "W2":
            s = free.pop(0)
            if n == 4: e(f"s_addk_i32 {cW2}, 0x1000")
            i = e.vmem(f"buffer_load_dwordx4 {v4(s)}, {v(vW2o)}, {sW2}, {cW2} offen offset:{(n%4)*1024} {WP}")
            got[item] = (s, i)
        elif kind == "RDY":
            e(f"v_mov_b32 {v(vRdy)}, 0")
            e(f"s_lshl_b32 {sT0}, {sB}, 5")
            i = e.vmem(f"buffer_load_dword {v(vRdy)}, {v(vRdy)}, {sDbg}, {sT0} offen sc1")
            got[item] = (None, i)
    def need(item): return {"W13": 2, "RDY": 0}.get(item[0], 1)
    def pump(limit=None):
        c = 0
        while queue and len(free) >= need(queue[0]) and (limit is None or c < limit):
            do_issue(queue.pop(0)); c += 1
    def use(item):
        s, i = got[item]
        e.wait_vm(i)
        return s
    def release(item):
        free.append(got[item][0])

    kn = 0
    for _ in range(K0):
        queue.append(("K", kn)); kn += 1
    pump()
    mk(9, 28, None, 0x100000)
    e(f"s_lshl_b32 {sT1}, {sB}, 10")
    mk(7, 4, sT1, 1024)
    mk(8, 22, None, 1024)
    id_clear = e.vmem(f"buffer_atomic_swap_x2 {v2(vT+4)}, {v(t3)}, {sWs}, {sOB} offen sc0 sc1")
    id_x = e.vmem(f"buffer_load_ushort {v(vDup)}, {v(t2)}, {sX}, {sXO} offen")
    id_g = e.vmem(f"buffer_load_ushort {v(vG)}, {v(t2)}, {sG}, {sXO} offen")
    e(f"s_lshl_b32 {sT1}, {sH}, 8")
    mk(2, 10, sT1, ("0x400000", sT1))
    e(f"s_lshl_b32 {sT1}, {sSG}, 4")
    mk(4, 16, sT1, (str(512*2752), sT1))
    mk(5, 18, sT1, (str(512*2752), sT1))
    for d in range(8):
        queue.append(("Wq", 2*d)); queue.append(("Wq", 2*d+1)); queue.append(("W13", d))
        if d < 7:
            for _ in range(KQ[d]):
                queue.append(("K", kn)); kn += 1
    while kn < 32:
        queue.append(("K", kn)); kn += 1
    for n in range(6): queue.append(("W2", n))
    vn = 0; wn = 0
    headv = 32 - TAILV
    acc = 0.0
    while vn < headv or wn < 16:
        if vn < headv and (wn >= 16 or vn * 16 <= wn * headv):
            queue.append(("V", vn)); vn += 1
        else:
            queue.append(("Wo", wn)); wn += 1
    queue.append(("RDY", 0))
    while vn < 32:
        queue.append(("V", vn)); vn += 1
    pump(6)
    mk(1, 8, sT0, None)
    e(f"s_lshl_b32 {sT1}, {sH}, 17")
    mk(3, 12, sT1, 0x20000)
    e(f"s_lshl_b32 {sT1}, {sSG}, 13")
    mk(6, 20, sT1, (str(1376*1024), sT1))
    mk(10, 24, None, 8192)
    mk(11, 26, None, 256)
    for nm, idx in (("wq", 2), ("w13", 4), ("w13", 5), ("wo", 3), ("w2", 6)):
        if nm in SKIP: e(f"s_mov_b32 s{srd(idx)+2}, 0")
    pump()
    e(f"v_and_b32 {v(t2)}, 1, v0")
    e(f"v_lshlrev_b32 {v(t2)}, 4, {v(t2)}")
    e(f"v_mov_b32 {v(t3)}, 0xffff")
    e(f"v_lshlrev_b32 {v(t2)}, {v(t2)}, {v(t3)}")
    e(f"v_lshrrev_b32 {v(t3)}, 1, {v(t1)}")
    for m in range(4):
        e(f"v_cmp_eq_u32 vcc, {m}, {v(t3)}")
        e(f"v_cndmask_b32 {v(vM+m)}, 0, {v(t2)}, vcc")
    stamp()
    e.wait_vm(id_g)
    e(f"v_lshlrev_b32 {v(t2)}, 16, {v(vDup)}")
    e(f"v_lshlrev_b32 {v(t3)}, 16, {v(vG)}")
    e(f"v_or_b32 {v(vDup)}, {v(vDup)}, {v(t2)}")
    e(f"v_mul_f32 {v(t2)}, {v(t2)}, {v(t3)}")
    e(f"v_cvt_pk_bf16_f32 {v(t2)}, {v(t2)}, {v(t2)}")
    e(f"v_and_b32 {v(t2)}, 0xffff0000, {v(t2)}")
    def rowred(op, r):
        e(f"{op}_dpp {v(r)}, {v(r)}, {v(r)} row_ror:4 {DPP}")
        e(f"{op}_dpp {v(r)}, {v(r)}, {v(r)} row_ror:8 {DPP}")
    def crossred(op, r, tmp):
        e(f"v_mov_b32 {v(tmp)}, {v(r)}")
        e(f"v_permlane16_swap_b32 {v(r)}, {v(tmp)}")
        e(f"{op} {v(r)}, {v(r)}, {v(tmp)}")
        e(f"v_mov_b32 {v(tmp)}, {v(r)}")
        e(f"v_permlane32_swap_b32 {v(r)}, {v(tmp)}")
        e(f"{op} {v(r)}, {v(r)}, {v(tmp)}")
    e(f"v_add_f32_dpp {v(t2)}, {v(t2)}, {v(t2)} quad_perm:[1,0,3,2] {DPP}")
    e(f"v_add_f32_dpp {v(t2)}, {v(t2)}, {v(t2)} quad_perm:[2,3,0,1] {DPP}")
    rowred("v_add_f32", t2)
    crossred("v_add_f32", t2, t3)
    e(f"s_lshl_b32 {sT0}, {sW}, 2")
    e(f"v_mov_b32 {v(t3)}, {sT0}")
    e("s_mov_b64 exec, 1")
    e(f"ds_write_b32 {v(t3)}, {v(t2)} offset:{GP}")
    e("s_mov_b64 exec, -1")

    def buildA(buf, src, lane):
        for m in range(4):
            e(f"v_and_b32_dpp {v(vA[buf]+m)}, {v(src)}, {v(vM+m)} row_newbcast:{lane} {DPP}")
    def mfma(D, A, B, first):
        e(f"v_mfma_f32_16x16x32_bf16 {v4(D)}, {v4(A)}, {v4(B)}, {'0' if first else v4(D)}")

    for n in range(16):
        buildA(n % 2, vDup, n)
        s = use(("Wq", n))
        mfma(vD0, vA[n % 2], s, n == 0)
        s = use(("W13r", n))
        mfma(vD1, vA[n % 2], s, n == 0)
        release(("Wq", n)); release(("W13r", n))
        pump()
    e(f"s_lshl_b32 {sT0}, {sW}, 10")
    e(f"v_add_u32 {v(t0)}, {sT0}, {v(vL16)}")
    vPW = t0
    e(f"ds_write_b128 {v(vPW)}, {v4(vD0)} offset:{QP}")
    e(f"ds_write_b128 {v(vPW)}, {v4(vD1)} offset:{UP}")
    e("s_waitcnt lgkmcnt(0)")
    stamp()
    e("s_barrier")
    e(f"s_cmp_lg_u32 {sW}, 0")
    e("s_cbranch_scc1 L_nosig")
    e(f"v_mov_b32 {v(t2)}, 0")
    e(f"v_mov_b32 {v(t3)}, 1")
    e(f"s_lshl_b32 {sT0}, {sB}, 5")
    e("s_mov_b64 exec, 1")
    e.vmem(f"buffer_atomic_add {v(t3)}, {v(t2)}, {sDbg}, {sT0} offen sc1", counted=False)
    e("s_mov_b64 exec, -1")
    e.label("L_nosig")
    e(f"v_lshlrev_b32 {v(t2)}, 3, v0")
    for k in range(4):
        e(f"ds_read2st64_b64 v[{vQ+4*k}:{vQ+4*k+3}], {v(t2)} offset0:{(QP + 2048*k)//512} offset1:{(QP + 2048*k + 1024)//512}")
    e(f"v_mov_b32 {v(t3)}, 0")
    e(f"ds_read_b128 {v4(vS)}, {v(t3)} offset:{GP}")
    e(f"ds_read_b128 {v4(vS+4)}, {v(t3)} offset:{GP+16}")
    e(f"v_bfe_u32 {v(t2)}, v0, 1, 4")
    e(f"v_lshlrev_b32 {v(t2)}, 4, {v(t2)}")
    e(f"v_lshrrev_b32 {v(t3)}, 5, v0")
    e(f"v_lshl_or_b32 {v(t2)}, {v(t3)}, 3, {v(t2)}")
    e(f"v_and_b32 {v(t3)}, 1, v0")
    e(f"v_lshl_or_b32 {v(t2)}, {v(t3)}, 2, {v(t2)}")
    e(f"s_lshl_b32 {sT0}, {sW}, 8")
    e(f"v_add_u32 {v(t2)}, {sT0}, {v(t2)}")
    e(f"v_lshrrev_b32 {v(t3)}, 4, v0")
    e(f"v_lshlrev_b32 {v(t3)}, 6, {v(t3)}")
    e(f"v_and_b32 {v(vT+4)}, 3, v0")
    e(f"v_lshl_or_b32 {v(t3)}, {v(vT+4)}, 4, {v(t3)}")
    e(f"v_add_u32 {v(t3)}, {sT0}, {v(t3)}")
    e("s_waitcnt lgkmcnt(0)")
    for st in (8, 4, 2):
        for k in range(0, st, 2):
            e(f"v_pk_add_f32 {v2(vQ+k)}, {v2(vQ+k)}, {v2(vQ+k+st)}")
    e(f"v_cvt_pk_bf16_f32 {v(vQ)}, {v(vQ)}, {v(vQ+1)}")
    e(f"ds_write_b32 {v(t2)}, {v(vQ)} offset:{QB}")
    e("s_waitcnt lgkmcnt(0)")
    e(f"ds_read_b128 {v4(vA[0])}, {v(t3)} offset:{QB}")
    e(f"v_lshrrev_b32 {v(t2)}, 4, v0")
    e(f"v_mul_u32_u24 {v(t2)}, 6, {v(t2)}")
    e(f"v_add_u32 {v(t2)}, {v(t2)}, {v(t1)}")
    e(f"s_lshr_b32 {sT0}, {sW}, 2")
    e(f"s_mul_i32 {sT0}, {sT0}, 24")
    e(f"v_add_u32 {v(t2)}, {sT0}, {v(t2)}")
    e(f"v_bfe_u32 {v(t3)}, {v(t2)}, 2, 1")
    e(f"v_lshlrev_b32 {v(t3)}, 8, {v(t3)}")
    e(f"v_lshrrev_b32 {v(vT+4)}, 3, {v(t2)}")
    e(f"v_lshl_or_b32 {v(t3)}, {v(vT+4)}, 4, {v(t3)}")
    e(f"v_and_b32 {v(vT+4)}, 3, {v(t2)}")
    e(f"v_lshl_or_b32 {v(t3)}, {v(vT+4)}, 2, {v(t3)}")
    e(f"v_add_u32 {v(vT+4)}, 128, {v(t3)}")
    for k in range(4):
        e(f"ds_read2st64_b32 {v2(vQ+2*k)}, {v(t3)} offset0:{(UP+2048*k)//256} offset1:{(UP+2048*k+1024)//256}")
    for k in range(4):
        e(f"ds_read2st64_b32 {v2(vQ+8+2*k)}, {v(vT+4)} offset0:{(UP+2048*k)//256} offset1:{(UP+2048*k+1024)//256}")
    e(f"v_cmp_gt_u32 vcc, {sCNT}, {v(t2)}")
    def rbf(r):
        e(f"v_cvt_pk_bf16_f32 {v(r)}, {v(r)}, {v(r)}")
        e(f"v_and_b32 {v(r)}, 0xffff0000, {v(r)}")
    def sigm(dst, src):
        e(f"v_mul_f32 {v(dst)}, 0xbfb8aa3b, {v(src)}")
        e(f"v_exp_f32 {v(dst)}, {v(dst)}")
        e(f"v_add_f32 {v(dst)}, 1.0, {v(dst)}")
        e(f"v_rcp_f32 {v(dst)}, {v(dst)}")
    for st in (4, 2):
        for k in range(0, st, 2):
            e(f"v_pk_add_f32 {v2(vS+k)}, {v2(vS+k)}, {v2(vS+k+st)}")
    e(f"v_add_f32 {v(vS)}, {v(vS)}, {v(vS+1)}")
    rbf(vS)
    sigm(vG, vS)
    rbf(vG)
    e(f"v_sub_f32 {v(vG1)}, 1.0, {v(vG)}")
    rbf(vG1)
    e("s_waitcnt lgkmcnt(0)")
    for base in (vQ, vQ + 8):
        for st in (4, 2):
            for k in range(0, st, 2):
                e(f"v_pk_add_f32 {v2(base+k)}, {v2(base+k)}, {v2(base+k+st)}")
        e(f"v_add_f32 {v(base)}, {v(base)}, {v(base+1)}")
        rbf(base)
    sigm(vHd, vQ)
    e(f"v_mul_f32 {v(vHd)}, {v(vHd)}, {v(vQ)}")
    rbf(vHd)
    e(f"v_mul_f32 {v(vHd)}, {v(vHd)}, {v(vQ+8)}")
    e(f"v_cvt_pk_bf16_f32 {v(vHd)}, {v(vHd)}, {v(vHd)}")
    e(f"v_cndmask_b32 {v(vHd)}, 0, {v(vHd)}, vcc")
    e(f"v_bfe_u32 {v(t2)}, v0, 2, 2")
    for u in range(4):
        e(f"v_cmp_eq_u32 vcc, {u}, {v(t2)}")
        for m in range(4):
            e(f"v_cndmask_b32 {v(vQ+4*u+m)}, 0, {v(vA[0]+m)}, vcc")
    stamp()
    def score_reduce(gi):
        D = (vD0, vD1)[gi % 2]
        r = vS + gi
        e(f"v_mov_b32_dpp {v(r)}, {v(D)} quad_perm:[0,0,0,0] {DPP}")
        e(f"v_mov_b32_dpp {v(vT+6)}, {v(D+1)} quad_perm:[1,1,1,1] {DPP}")
        e(f"v_mov_b32_dpp {v(vT+7)}, {v(D+2)} quad_perm:[2,2,2,2] {DPP}")
        e(f"v_add_f32_dpp {v(r)}, {v(D+3)}, {v(r)} quad_perm:[3,3,3,3] {DPP}")
        e(f"v_add_f32 {v(vT+6)}, {v(vT+6)}, {v(vT+7)}")
        e(f"v_add_f32 {v(r)}, {v(r)}, {v(vT+6)}")
    for gi in range(8):
        D = (vD0, vD1)[gi % 2]
        for u in range(4):
            s = use(("K", 4*gi+u))
            mfma(D, s, vQ + 4*u, u == 0)
        for u in range(4): release(("K", 4*gi+u))
        pump()
        if gi > 0: score_reduce(gi - 1)
    for n in range(6):
        buildA(n % 2, vHd, n)
        s = use(("W2", n))
        mfma(vD2, vA[n % 2], s, n == 0)
        release(("W2", n))
    pump()
    score_reduce(7)
    e(f"s_mov_b32 {sT0}, 0x3db504f3")
    for k in range(0, 8, 2):
        a, b = vS + k, vS + k + 1
        e(f"v_cvt_pk_bf16_f32 {v(b)}, {v(a)}, {v(b)}")
        e(f"v_lshlrev_b32 {v(a)}, 16, {v(b)}")
        e(f"v_and_b32 {v(b)}, 0xffff0000, {v(b)}")
        e(f"v_mul_f32 {v(a)}, {sT0}, {v(a)}")
        e(f"v_mul_f32 {v(b)}, {sT0}, {v(b)}")
        e(f"v_cvt_pk_bf16_f32 {v(b)}, {v(a)}, {v(b)}")
        e(f"v_lshlrev_b32 {v(a)}, 16, {v(b)}")
        e(f"v_and_b32 {v(b)}, 0xffff0000, {v(b)}")
    vm_, vl_ = vT + 4, vT + 5
    e(f"v_max3_f32 {v(vm_)}, {v(vS)}, {v(vS+1)}, {v(vS+2)}")
    e(f"v_max3_f32 {v(vm_)}, {v(vm_)}, {v(vS+3)}, {v(vS+4)}")
    e(f"v_max3_f32 {v(vm_)}, {v(vm_)}, {v(vS+5)}, {v(vS+6)}")
    e(f"v_max_f32 {v(vm_)}, {v(vm_)}, {v(vS+7)}")
    rowred("v_max_f32", vm_)
    crossred("v_max_f32", vm_, t3)
    for k in range(8):
        e(f"v_sub_f32 {v(vS+k)}, {v(vS+k)}, {v(vm_)}")
    for k in range(8):
        e(f"v_mul_f32 {v(vS+k)}, {LOG2E}, {v(vS+k)}")
    for k in range(8):
        e(f"v_exp_f32 {v(vS+k)}, {v(vS+k)}")
    for r in range(4):
        e(f"v_mul_f32 {v(vD2+r)}, {v(vG1)}, {v(vD2+r)}")
    e(f"v_pk_add_f32 {v2(vA[0])}, {v2(vS)}, {v2(vS+2)}")
    e(f"v_pk_add_f32 {v2(vA[0]+2)}, {v2(vS+4)}, {v2(vS+6)}")
    e(f"v_pk_add_f32 {v2(vA[0])}, {v2(vA[0])}, {v2(vA[0]+2)}")
    e(f"v_add_f32 {v(vl_)}, {v(vA[0])}, {v(vA[0]+1)}")
    rowred("v_add_f32", vl_)
    crossred("v_add_f32", vl_, t3)
    e(f"s_lshl_b32 {sT0}, {sW}, 3")
    e(f"v_mov_b32 {v(t3)}, {sT0}")
    e("s_mov_b64 exec, 1")
    e(f"ds_write_b64 {v(t3)}, {v2(vm_)} offset:{ML}")
    e("s_mov_b64 exec, -1")
    e("s_waitcnt lgkmcnt(0)")
    stamp()
    e("s_barrier")
    e(f"v_mov_b32 {v(t3)}, 0")
    for k in range(4):
        e(f"ds_read_b128 {v4(vQ+4*k)}, {v(t3)} offset:{ML+16*k}")
    e("s_waitcnt lgkmcnt(0)")
    e(f"v_max3_f32 {v(t2)}, {v(vQ)}, {v(vQ+2)}, {v(vQ+4)}")
    e(f"v_max3_f32 {v(t2)}, {v(t2)}, {v(vQ+6)}, {v(vQ+8)}")
    e(f"v_max3_f32 {v(t2)}, {v(t2)}, {v(vQ+10)}, {v(vQ+12)}")
    e(f"v_max_f32 {v(t2)}, {v(t2)}, {v(vQ+14)}")
    for k in range(8): e(f"v_sub_f32 {v(vQ+2*k)}, {v(vQ+2*k)}, {v(t2)}")
    e(f"v_sub_f32 {v(vm_)}, {v(vm_)}, {v(t2)}")
    for k in range(8): e(f"v_mul_f32 {v(vQ+2*k)}, {LOG2E}, {v(vQ+2*k)}")
    e(f"v_mul_f32 {v(vm_)}, {LOG2E}, {v(vm_)}")
    for k in range(8): e(f"v_exp_f32 {v(vQ+2*k)}, {v(vQ+2*k)}")
    e(f"v_exp_f32 {v(vm_)}, {v(vm_)}")
    e(f"v_mul_f32 {v(vl_)}, {v(vQ)}, {v(vQ+1)}")
    for k in range(1, 8): e(f"v_fmac_f32 {v(vl_)}, {v(vQ+2*k)}, {v(vQ+2*k+1)}")
    e(f"v_rcp_f32 {v(vl_)}, {v(vl_)}")
    e(f"v_mul_f32 {v(vm_)}, {v(vm_)}, {v(vl_)}")
    for k in range(8): e(f"v_mul_f32 {v(vS+k)}, {v(vS+k)}, {v(vm_)}")
    for k in range(8): e(f"v_cvt_pk_bf16_f32 {v(vS+k)}, {v(vS+k)}, {v(vS+k)}")
    for k in range(4): free.append(vQ + 4*k)
    pump()
    vOA, vSO, vPO, vOO = vKo, vWqo, vW13o, vW2o
    assert not any(it[0] in ("K", "Wq", "W13", "W2") for it in queue)
    e(f"s_lshr_b32 {sT0}, {sW}, 2")
    e(f"s_lshl_b32 {sT0}, {sT0}, 8")
    e(f"v_lshlrev_b32 {v(vOA)}, 2, v0")
    e(f"v_add_u32 {v(vOA)}, {sT0}, {v(vOA)}")
    e(f"v_lshlrev_b32 {v(vSO)}, 5, {v(t1)}")
    e(f"v_and_b32 {v(t2)}, 16, v0")
    e(f"v_or_b32 {v(vSO)}, {v(vSO)}, {v(t2)}")
    e(f"v_lshrrev_b32 {v(vPO)}, 2, v0")
    e(f"v_lshlrev_b32 {v(vPO)}, 11, {v(vPO)}")
    e(f"v_and_b32 {v(t2)}, 3, v0")
    e(f"v_lshl_or_b32 {v(vPO)}, {v(t2)}, 4, {v(vPO)}")
    e(f"v_lshlrev_b32 {v(vOO)}, 3, {v(t2)}")
    e(f"v_bfe_u32 {v(t2)}, v0, 4, 1")
    e(f"v_lshl_or_b32 {v(vOO)}, {v(t2)}, 2, {v(vOO)}")
    e(f"v_lshrrev_b32 {v(t2)}, 5, v0")
    e(f"v_lshl_or_b32 {v(vOO)}, {v(t2)}, 1, {v(vOO)}")
    e(f"s_lshl_b32 {cK}, {sB}, 17")
    e(f"s_lshl_b32 {sT0}, {sH}, 6")
    e(f"s_add_u32 {cK}, {cK}, {sT0}")
    e(f"s_add_u32 {cWq}, {cK}, 0x8000")
    e(f"s_add_u32 {cW13}, {cK}, 0x10000")
    e(f"s_add_u32 {cW2}, {cK}, 0x18000")
    e(f"s_lshl_b32 {sXO}, s2, 5")
    stamp()
    buildA(0, vS, 0)
    for n in range(32):
        if n + 1 < 32: buildA((n + 1) % 2, vS + (n + 1) // 4, 4 * ((n + 1) % 4))
        s = use(("V", n))
        mfma(vD0, vA[n % 2], s, n == 0)
        release(("V", n))
        pump()
    assert not queue
    e(f"ds_write_b128 {v(vPW)}, {v4(vD0)} offset:{OP}")
    e("s_waitcnt lgkmcnt(0)")
    stamp()
    e("s_barrier")
    for k in range(4):
        e(f"ds_read2st64_b32 {v2(vS+2*k)}, {v(vOA)} offset0:{(OP+2048*k)//256} offset1:{(OP+2048*k+1024)//256}")
    e("s_waitcnt lgkmcnt(0)")
    e(f"v_pk_add_f32 {v2(vS)}, {v2(vS)}, {v2(vS+4)}")
    e(f"v_pk_add_f32 {v2(vS+2)}, {v2(vS+2)}, {v2(vS+6)}")
    e(f"v_pk_add_f32 {v2(vS)}, {v2(vS)}, {v2(vS+2)}")
    e(f"v_add_f32 {v(vS)}, {v(vS)}, {v(vS+1)}")
    e(f"v_cvt_pk_bf16_f32 {v(vDup)}, {v(vS)}, {v(vS)}")
    buildA(0, vDup, 0)
    for n in range(16):
        if n + 1 < 16: buildA((n + 1) % 2, vDup, n + 1)
        s = use(("Wo", n))
        mfma(vD1, vA[n % 2], s, n == 0)
    e("s_mov_b32 exec_hi, 0")
    for r in range(4):
        e(f"v_fmac_f32 {v(vD2+r)}, {v(vG)}, {v(vD1+r)}")
    for r in range(4):
        e(f"v_min_u32 {v(vD2+r)}, -2, {v(vD2+r)}")
    e.vmem(f"buffer_store_dwordx4 {v4(vD2)}, {v(vSO)}, {sWs}, {sOB} offen sc1")
    e(f"s_cmp_lg_u32 {sW}, 0")
    e("s_cbranch_scc1 L_end")
    e("s_mov_b64 exec, -1")
    stamp()
    e(f"s_mov_b32 {sT1}, 0x100000")
    e(f"v_cmp_le_u32 vcc, 32, {v(vRdy)}")
    e("s_cbranch_vccnz L_poll")
    e(f"s_lshl_b32 {sT0}, {sB}, 5")
    e(f"v_mov_b32 {v(t2)}, 0")
    e.label("L_rdy")
    e(f"s_sub_u32 {sT1}, {sT1}, 1")
    e("s_cbranch_scc1 L_end")
    e(f"buffer_load_dword {v(vRdy)}, {v(t2)}, {sDbg}, {sT0} offen sc1")
    e("s_waitcnt vmcnt(0)")
    e(f"v_cmp_le_u32 vcc, 32, {v(vRdy)}")
    e("s_cbranch_vccz L_rdy")
    e.label("L_poll")
    P = slots[0]
    e(f"buffer_load_dwordx4 {v4(P)}, {v(vPO)}, {sWs}, {cK} offen sc1")
    e(f"buffer_load_dwordx4 {v4(P+4)}, {v(vPO)}, {sWs}, {cWq} offen sc1")
    e(f"buffer_load_dwordx4 {v4(P+8)}, {v(vPO)}, {sWs}, {cW13} offen sc1")
    e(f"buffer_load_dwordx4 {v4(P+12)}, {v(vPO)}, {sWs}, {cW2} offen sc1")
    e(f"s_sub_u32 {sT1}, {sT1}, 1")
    e("s_cbranch_scc1 L_end")
    e("s_waitcnt vmcnt(0)")
    e(f"v_max3_u32 {v(t2)}, {v(P)}, {v(P+1)}, {v(P+2)}")
    e(f"v_max3_u32 {v(t3)}, {v(P+3)}, {v(P+4)}, {v(P+5)}")
    e(f"v_max3_u32 {v(t2)}, {v(t2)}, {v(P+6)}, {v(P+7)}")
    e(f"v_max3_u32 {v(t3)}, {v(t3)}, {v(P+8)}, {v(P+9)}")
    e(f"v_max3_u32 {v(t2)}, {v(t2)}, {v(P+10)}, {v(P+11)}")
    e(f"v_max3_u32 {v(t3)}, {v(t3)}, {v(P+12)}, {v(P+13)}")
    e(f"v_max3_u32 {v(t2)}, {v(t2)}, {v(P+14)}, {v(P+15)}")
    e(f"v_max_u32 {v(t2)}, {v(t2)}, {v(t3)}")
    e(f"v_cmp_eq_u32 vcc, -1, {v(t2)}")
    e("s_cbranch_vccnz L_poll")
    e(f"v_pk_add_f32 {v2(P)}, {v2(P)}, {v2(P+4)}")
    e(f"v_pk_add_f32 {v2(P+2)}, {v2(P+2)}, {v2(P+6)}")
    e(f"v_pk_add_f32 {v2(P+8)}, {v2(P+8)}, {v2(P+12)}")
    e(f"v_pk_add_f32 {v2(P+10)}, {v2(P+10)}, {v2(P+14)}")
    e(f"v_pk_add_f32 {v2(P)}, {v2(P)}, {v2(P+8)}")
    e(f"v_pk_add_f32 {v2(P+2)}, {v2(P+2)}, {v2(P+10)}")
    e(f"v_permlane32_swap_b32 {v(P)}, {v(P+1)}")
    e(f"v_permlane32_swap_b32 {v(P+2)}, {v(P+3)}")
    e(f"v_add_f32 {v(P)}, {v(P)}, {v(P+1)}")
    e(f"v_add_f32 {v(P+2)}, {v(P+2)}, {v(P+3)}")
    e(f"v_permlane16_swap_b32 {v(P)}, {v(P+2)}")
    e(f"v_add_f32 {v(P)}, {v(P)}, {v(P+2)}")
    rowred("v_add_f32", P)
    e(f"v_cvt_pk_bf16_f32 {v(P)}, {v(P)}, {v(P)}")
    e(f"buffer_store_short {v(P)}, {v(vOO)}, {sOut}, {sXO} offen")
    if STAMPS:
        e("s_waitcnt vmcnt(0)")
        stamp()
        ns = stamp_n[0] + 1
        e("s_waitcnt lgkmcnt(0)")
        if SPIN:
            src = 4 + 2 * (SPIN - 1); last = 4 + 2 * (ns - 2)
            e(f"s_sub_u32 {sT0}, s{src}, s98")
            e(f"s_mul_i32 {sT0}, {sT0}, 10")
            e.label("L_spin")
            e("s_memrealtime s[100:101]")
            e("s_waitcnt lgkmcnt(0)")
            e(f"s_sub_u32 {sT1}, s100, s{last}")
            e(f"s_cmp_lt_u32 {sT1}, {sT0}")
            e("s_cbranch_scc1 L_spin")
            e("s_endpgm")
        e(f"s_add_u32 s{srd(9)}, s{srd(9)}, 0x20000000")
        e(f"s_addc_u32 s{srd(9)+1}, s{srd(9)+1}, 0")
        e(f"s_mul_i32 {sT0}, s2, {8*ns}")
        e(f"v_mov_b32 {v(t2)}, 0")
        e("s_mov_b64 exec, 1")
        for k in range(ns):
            src = 98 if k == 0 else 4 + 2 * (k - 1)
            e(f"v_mov_b32 {v(vT+4)}, s{src}")
            e(f"v_mov_b32 {v(vT+5)}, s{src+1}")
            e(f"buffer_store_dwordx2 {v2(vT+4)}, {v(t2)}, {sWs}, {sT0} offen offset:{8*k}")
            e("s_waitcnt vmcnt(0)")
        print("stamps per wg:", ns, file=sys.stderr)
    e.label("L_end")
    e("s_endpgm")
    e.raw('.section .rodata,"a"')
    e.raw(".p2align 6")
    e.raw(f".amdhsa_kernel {NAME}_kernel")
    e.raw(f"  .amdhsa_next_free_vgpr {NV}")
    e.raw("  .amdhsa_next_free_sgpr 102")
    e.raw(f"  .amdhsa_accum_offset {(NV + 3) // 4 * 4}")
    e.raw("  .amdhsa_group_segment_fixed_size 0")
    e.raw("  .amdhsa_kernarg_size 104")
    e.raw("  .amdhsa_user_sgpr_count 2")
    e.raw("  .amdhsa_user_sgpr_kernarg_segment_ptr 1")
    e.raw("  .amdhsa_system_sgpr_workgroup_id_x 1")
    e.raw("  .amdhsa_float_denorm_mode_32 3")
    e.raw(".end_amdhsa_kernel")
    print(f"NV={NV} nops={E.nops} lines={len(E.lines)}", file=sys.stderr)
    return E.text()

if __name__ == "__main__":
    ap = argparse.ArgumentParser()
    ap.add_argument("out")
    ap.add_argument("--kw", default="{}")
    a = ap.parse_args()
    open(a.out, "w").write(gen(**eval(a.kw)))
```
